```python
import torch

def _softmax(x, axis=-1):
    return torch.softmax(x, dim=axis)
def _gelu(x):
    return torch.nn.functional.gelu(x, approximate="tanh")
def _silu(x):
    return torch.nn.functional.silu(x)
def _sigmoid(x):
    return torch.sigmoid(x)
def _layernorm(x, axis=-1, eps=1e-5):
    m = x.mean(dim=axis, keepdim=True)
    v = x.var(dim=axis, keepdim=True, unbiased=False)
    return (x - m) / torch.sqrt(v + eps)
def _scatter_add(tgt, idx, src, axis=0):
    return tgt.clone().index_add_(axis, idx, src)
def _segment_sum(src, seg, n):
    out = torch.zeros((n,) + src.shape[1:], dtype=src.dtype)
    return out.index_add_(0, seg, src)
def _pad(x, pw):
    flat = tuple(v for pair in reversed(pw) for v in pair)
    return torch.nn.functional.pad(x, flat)

kernel_name = 'sequential_preLN__spectral_fnet__moe_arch_mod__prompt'

def setup_inputs():

    _w = (lambda a: (lambda t: t.to(torch.bfloat16) if t.is_floating_point() else t)(torch.as_tensor(a)))
    def _A_setup():
        B, S, D = 1, 2048, 512
        ns = torch.arange(S)[:, None] * torch.arange(S)[None, :]
        nd = torch.arange(D)[:, None] * torch.arange(D)[None, :]
        Ws_re = torch.cos(-2.0 * torch.pi * ns / S).to(float)
        Ws_im = torch.sin(-2.0 * torch.pi * ns / S).to(float)
        Wd_re = torch.cos(-2.0 * torch.pi * nd / D).to(float)
        Wd_im = torch.sin(-2.0 * torch.pi * nd / D).to(float)
        return {
            "x": _w((lambda *s: torch.randn(*s, dtype=torch.bfloat16) * 0.1)(B, S, D)),
            "dft_seq_re": _w(Ws_re),
            "dft_seq_im": _w(Ws_im),
            "dft_hid_re": _w(Wd_re),
            "dft_hid_im": _w(Wd_im),
        }
    _A_in = _A_setup()

    def _B_setup():
        B, S, D, F, C = 1, 2048, 512, 1792, 8
        return {
            "x": _w((lambda *s: torch.randn(*s, dtype=torch.bfloat16) * 0.1)(B, S, D)),
            "w_r": _w((lambda *s: torch.randn(*s, dtype=torch.bfloat16) * 1.6)(D)),
            "w_gate": _w((lambda *s: torch.randn(*s, dtype=torch.bfloat16) * 0.8)(D, F)),
            "w_up": _w((lambda *s: torch.randn(*s, dtype=torch.bfloat16) * 0.8)(D, F)),
            "w_down": _w((lambda *s: torch.randn(*s, dtype=torch.bfloat16) * 0.8)(F, D)),
        }
    _B_in = _B_setup()

    return {
        "A_x": _A_in["x"],
        "A_dft_seq_re": _A_in["dft_seq_re"],
        "A_dft_seq_im": _A_in["dft_seq_im"],
        "A_dft_hid_re": _A_in["dft_hid_re"],
        "A_dft_hid_im": _A_in["dft_hid_im"],
        "B_x": _B_in["x"],
        "B_w_r": _B_in["w_r"],
        "B_w_gate": _B_in["w_gate"],
        "B_w_up": _B_in["w_up"],
        "B_w_down": _B_in["w_down"],
    }

def reference(A_x, A_dft_seq_re, A_dft_seq_im, A_dft_hid_re, A_dft_hid_im, B_x, B_w_r, B_w_gate, B_w_up, B_w_down):
    def _A_ref(x, dft_seq_re, dft_seq_im, dft_hid_re, dft_hid_im):
        a = torch.einsum("bsd,ed->bse", x, dft_hid_re)
        b = torch.einsum("bsd,ed->bse", x, dft_hid_im)
        y = torch.einsum("ts,bse->bte", dft_seq_re, a) - torch.einsum("ts,bse->bte", dft_seq_im, b)
        return y

    def _B_ref(x, w_r, w_gate, w_up, w_down):
        B, S, D = x.shape
        C = 8
        r = x @ w_r
        idx = torch.argsort(-r, axis=-1)[:, :C]
        idx_e = (lambda x, n, axis: torch.repeat_interleave(x, n, dim=axis))(idx.reshape(B, C, 1), D, axis=2)
        x_sel = (lambda x, i, axis: torch.take_along_dim(x, i, dim=axis))(x, idx_e, axis=1)
        g = _silu(x_sel @ w_gate)
        u = x_sel @ w_up
        y = (g * u) @ w_down
        r_sel = _sigmoid((lambda x, i, axis: torch.take_along_dim(x, i, dim=axis))(r, idx, axis=1))
        y = y * r_sel.reshape(B, C, 1)
        b_off = (torch.arange(B) * S).reshape(B, 1)
        flat_idx = (idx + b_off).reshape(B * C)
        zero = (x * 0.0).reshape(B * S, D)
        upd = _scatter_add(zero, flat_idx, y.reshape(B * C, D), axis=0)
        return x + upd.reshape(B, S, D)

    x = A_x
    h = x + _A_ref(_layernorm(x, axis=-1), A_dft_seq_re, A_dft_seq_im, A_dft_hid_re, A_dft_hid_im)
    h2 = h + _B_ref(_layernorm(h, axis=-1), B_w_r, B_w_gate, B_w_up, B_w_down)
    return h2
```

```python
import sys

NAME = "sequential_preLN__spectral_fnet__moe_arch_mod__prompt"

WS_BF = 0
WS_P = 4 << 20
WS_Q = 6 << 20
WS_HN = 8 << 20
WS_KEYS = 10 << 20
WS_ACT = (10 << 20) + 65536
WS_SEL = (10 << 20) + 131072
WS_TOTAL = 11 << 20


class Asm:
    def __init__(self):
        self.lines = []

    def __call__(self, s):
        for ln in s.strip("\n").split("\n"):
            ln = ln.strip()
            if ln:
                self.lines.append("    " + ln)

    def label(self, s):
        self.lines.append(s + ":")

    def raw(self, s):
        self.lines.append(s)

    def text(self):
        return "\n".join(self.lines) + "\n"


def vr(a, n):
    return f"v[{a}:{a + n - 1}]"


def sr(a, n):
    return f"s[{a}:{a + n - 1}]"


def srd(A, d, base, nbytes):
    A(f"s_mov_b32 s{d}, s{base}")
    A(f"s_and_b32 s{d + 1}, s{base + 1}, 0xffff")
    A(f"s_mov_b32 s{d + 2}, {nbytes:#x}")
    A(f"s_mov_b32 s{d + 3}, 0x00020000")


def srd_off(A, d, base, off, nbytes):
    A(f"s_add_u32 s{d}, s{base}, {off:#x}")
    A(f"s_addc_u32 s{d + 1}, s{base + 1}, 0")
    A(f"s_and_b32 s{d + 1}, s{d + 1}, 0xffff")
    A(f"s_mov_b32 s{d + 2}, {nbytes:#x}")
    A(f"s_mov_b32 s{d + 3}, 0x00020000")


DPP = "row_mask:0xf bank_mask:0xf"


def row_reduce(A, op, v):
    A("s_nop 1")
    A(f"{op}_dpp v{v}, v{v}, v{v} quad_perm:[1,0,3,2] {DPP}")
    A("s_nop 1")
    A(f"{op}_dpp v{v}, v{v}, v{v} quad_perm:[2,3,0,1] {DPP}")
    A("s_nop 1")
    A(f"{op}_dpp v{v}, v{v}, v{v} row_half_mirror {DPP}")
    A("s_nop 1")
    A(f"{op}_dpp v{v}, v{v}, v{v} row_mirror {DPP}")


def cross_rows_sum(A, v, tmp):
    A(f"v_mov_b32 v{tmp}, v{v}")
    A("s_nop 1")
    A(f"v_permlane16_swap_b32 v{v}, v{tmp}")
    A("s_nop 1")
    A(f"v_add_f32 v{v}, v{v}, v{tmp}")
    A(f"v_mov_b32 v{tmp}, v{v}")
    A("s_nop 1")
    A(f"v_permlane32_swap_b32 v{v}, v{tmp}")
    A("s_nop 1")
    A(f"v_add_f32 v{v}, v{v}, v{tmp}")


def wave_sum(A, v, tmp):
    row_reduce(A, "v_add_f32", v)
    cross_rows_sum(A, v, tmp)


def bf16_round(A, v):
    A(f"v_cvt_pk_bf16_f32 v{v}, v{v}, v{v}")
    A(f"v_lshlrev_b32 v{v}, 16, v{v}")


def kernel_header(A, name):
    A.raw(f".globl {name}")
    A.raw(".p2align 8")
    A.raw(f".type {name},@function")
    A.label(name)


def kd(name, vgpr, sgpr=96):
    acc = (vgpr + 3) // 4 * 4
    return f""".p2align 6
.amdhsa_kernel {name}
  .amdhsa_next_free_vgpr {vgpr}
  .amdhsa_next_free_sgpr {sgpr}
  .amdhsa_accum_offset {acc}
  .amdhsa_group_segment_fixed_size 0
  .amdhsa_kernarg_size 104
  .amdhsa_user_sgpr_count 2
  .amdhsa_user_sgpr_kernarg_segment_ptr 1
  .amdhsa_system_sgpr_workgroup_id_x 1
  .amdhsa_float_denorm_mode_32 3
.end_amdhsa_kernel
"""


def gen_k1(A):
    name = "k1_lngemm_kernel"
    kernel_header(A, name)
    A(f"""
    s_cmp_ge_u32 s2, 256
    s_cbranch_scc1 L_k1_end
    s_load_dwordx2 s[4:5], s[0:1], 0
    s_load_dwordx4 s[8:11], s[0:1], 24
    s_load_dwordx2 s[12:13], s[0:1], 96
    s_and_b32 s28, s2, 7
    s_lshr_b32 s29, s2, 3
    s_lshr_b32 s30, s29, 3
    s_lshl_b32 s28, s28, 2
    s_add_u32 s28, s28, s30
    s_and_b32 s29, s29, 7
    v_and_b32 v1, 63, v0
    v_lshrrev_b32 v2, 6, v0
    s_nop 0
    v_readfirstlane_b32 s30, v2
    """)
    A("""
    v_and_b32 v8, 15, v1
    v_lshrrev_b32 v9, 2, v8
    v_lshlrev_b32 v9, 3, v9
    v_and_b32 v10, 3, v8
    v_add_u32 v9, v9, v10
    v_lshrrev_b32 v10, 4, v1
    v_lshlrev_b32 v10, 4, v10
    """)
    A("""
    s_lshr_b32 s31, s30, 1
    s_lshl_b32 s31, s31, 5
    s_and_b32 s32, s30, 1
    s_lshl_b32 s33, s32, 2
    s_add_u32 s31, s31, s33
    s_lshl_b32 s33, s28, 6
    s_add_u32 s31, s31, s33
    v_add_u32 v2, s31, v9
    v_lshlrev_b32 v2, 10, v2
    v_add_u32 v2, v2, v10
    """)
    A("""
    s_and_b32 s33, s29, 3
    s_lshl_b32 s33, s33, 1
    s_lshr_b32 s34, s30, 1
    s_add_u32 s33, s33, s34
    s_lshl_b32 s34, s33, 6
    s_lshl_b32 s35, s32, 5
    s_add_u32 s34, s34, s35
    v_add_u32 v3, s34, v9
    v_lshlrev_b32 v3, 10, v3
    v_add_u32 v3, v3, v10
    v_add_u32 v4, 0x1000, v3
    v_lshlrev_b32 v5, 4, v1
    s_lshl_b32 s35, s30, 14
    v_add_u32 v6, s35, v5
    """)
    A("""
    s_lshr_b32 s36, s29, 2
    s_lshl_b32 s35, s36, 21
    s_lshl_b32 s37, s33, 18
    s_add_u32 s35, s35, s37
    s_lshl_b32 s37, s28, 13
    s_add_u32 s35, s35, s37
    s_lshl_b32 s37, s32, 12
    s_add_u32 s35, s35, s37
    v_add_u32 v7, s35, v5
    s_waitcnt lgkmcnt(0)
    """)
    srd(A, 16, 4, 2048 * 512 * 2)
    A("""
    s_cmp_eq_u32 s36, 0
    s_cselect_b32 s20, s8, s10
    s_cselect_b32 s21, s9, s11
    s_and_b32 s21, s21, 0xffff
    s_mov_b32 s22, 0x80000
    s_mov_b32 s23, 0x00020000
    """)
    srd_off(A, 24, 12, WS_BF, 4 << 20)
    XB = 16
    WB = 80
    for c in range(16):
        A(f"buffer_load_dwordx4 {vr(XB + 4 * c, 4)}, v2, s[16:19], 0 offen offset:{c * 64}")
    for c in range(16):
        for i in range(2):
            A(f"buffer_load_dwordx4 {vr(WB + (i * 16 + c) * 4, 4)}, v{3 + i}, s[20:23], 0 offen offset:{c * 64}")
    A("v_mov_b32 v11, 0x3f803f80")
    A("v_mov_b32 v12, 0")
    A("s_waitcnt vmcnt(32)")
    for r in range(64):
        A(f"v_dot2_f32_bf16 v12, v{XB + r}, v11, v12")
    A("s_nop 2")
    cross_rows_sum(A, 12, 13)
    A("""
    v_mul_f32 v12, 0x3b000000, v12
    v_mov_b32 v13, v12
    """)
    bf16_round(A, 13)
    A("""
    v_sub_f32 v14, v12, v13
    v_sub_f32 v208, 0, v13
    v_sub_f32 v209, 0, v13
    v_mov_b32 v210, 0
    v_mov_b32 v211, 0
    """)
    for r in range(64):
        t = 212 + (r & 3) * 2
        A(f"v_lshlrev_b32 v{t}, 16, v{XB + r}")
        A(f"v_and_b32 v{t + 1}, 0xffff0000, v{XB + r}")
        A(f"v_pk_add_f32 {vr(t, 2)}, {vr(t, 2)}, v[208:209]")
        A(f"v_pk_fma_f32 v[210:211], {vr(t, 2)}, {vr(t, 2)}, v[210:211]")
        A(f"v_cvt_pk_bf16_f32 v{XB + r}, v{t}, v{t + 1}")
    A("v_add_f32 v15, v210, v211")
    cross_rows_sum(A, 15, 13)
    A("""
    v_mul_f32 v15, 0x3b000000, v15
    v_fma_f32 v15, -v14, v14, v15
    v_max_f32 v15, 0, v15
    """)
    bf16_round(A, 15)
    A("v_add_f32 v15, 0x3727c5ac, v15")
    bf16_round(A, 15)
    A("v_sqrt_f32 v15, v15")
    A("s_nop 0")
    bf16_round(A, 15)
    A("v_rcp_f32 v208, v15")
    A("s_nop 0")
    A("v_mov_b32 v209, v208")
    for r in range(64):
        t = 212 + (r & 3) * 2
        A(f"v_lshlrev_b32 v{t}, 16, v{XB + r}")
        A(f"v_and_b32 v{t + 1}, 0xffff0000, v{XB + r}")
        A(f"v_pk_mul_f32 {vr(t, 2)}, {vr(t, 2)}, v[208:209]")
        A(f"v_cvt_pk_bf16_f32 v{XB + r}, v{t}, v{t + 1}")
        if (r & 3) == 3:
            c = r >> 2
            A(f"ds_write_b128 v6, {vr(XB + 4 * c, 4)} offset:{c * 1024}")
    A("s_waitcnt lgkmcnt(0)")
    A("s_barrier")
    ACC = 16
    AF = 48

    def rd(c):
        for mt in range(4):
            A(f"ds_read_b128 {vr(AF + ((c & 1) * 4 + mt) * 4, 4)}, v5 offset:{mt * 16384 + c * 1024}")

    rd(0)
    for c in range(16):
        if c + 1 < 16:
            rd(c + 1)
            A(f"s_waitcnt vmcnt({30 - 2 * c}) lgkmcnt(4)")
        else:
            A("s_waitcnt vmcnt(0) lgkmcnt(0)")
        for mt in range(4):
            for i in range(2):
                acc = vr(ACC + (mt * 2 + i) * 4, 4)
                a = vr(AF + ((c & 1) * 4 + mt) * 4, 4)
                b = vr(WB + (i * 16 + c) * 4, 4)
                cc = "0" if c == 0 else acc
                A(f"v_mfma_f32_16x16x32_bf16 {acc}, {a}, {b}, {cc}")
    A("s_nop 7")
    A("s_nop 1")
    for i in range(2):
        for ks in range(2):
            o = 208 + (i * 2 + ks) * 4
            t0 = ACC + ((2 * ks) * 2 + i) * 4
            t1 = ACC + ((2 * ks + 1) * 2 + i) * 4
            A(f"v_cvt_pk_bf16_f32 v{o}, v{t0}, v{t0 + 1}")
            A(f"v_cvt_pk_bf16_f32 v{o + 1}, v{t0 + 2}, v{t0 + 3}")
            A(f"v_cvt_pk_bf16_f32 v{o + 2}, v{t1}, v{t1 + 1}")
            A(f"v_cvt_pk_bf16_f32 v{o + 3}, v{t1 + 2}, v{t1 + 3}")
            A(f"buffer_store_dwordx4 {vr(o, 4)}, v7, s[24:27], 0 offen offset:{i * 2048 + ks * 1024}")
    A.label("L_k1_end")
    A("s_endpgm")
    return name, kd(name, 224), (256, 256, 65536)


def gen_k2(A, NS=4):
    name = "k2_gemm_kernel"
    kernel_header(A, name)
    A("""
    s_cmp_ge_u32 s2, 256
    s_cbranch_scc1 L_k2_end
    s_load_dwordx4 s[4:7], s[0:1], 8
    s_load_dwordx2 s[12:13], s[0:1], 96
    s_and_b32 s28, s2, 7
    s_lshr_b32 s29, s2, 3
    s_and_b32 s30, s28, 1
    s_lshr_b32 s31, s28, 1
    s_lshl_b32 s31, s31, 2
    s_lshr_b32 s32, s29, 3
    s_add_u32 s31, s31, s32
    s_and_b32 s32, s29, 7
    v_and_b32 v1, 63, v0
    v_lshrrev_b32 v2, 6, v0
    s_nop 0
    v_readfirstlane_b32 s33, v2
    """)
    A("""
    v_and_b32 v8, 15, v1
    v_lshrrev_b32 v9, 4, v1
    s_lshl_b32 s34, s31, 7
    s_lshl_b32 s35, s33, 5
    s_add_u32 s34, s34, s35
    v_add_u32 v10, s34, v8
    v_lshlrev_b32 v2, 12, v10
    v_lshl_add_u32 v2, v9, 4, v2
    v_add_u32 v3, 0x10000, v2
    v_lshlrev_b32 v5, 4, v1
    s_lshl_b32 s35, s33, 11
    v_add_u32 v4, s35, v5
    """)
    A("""
    v_lshlrev_b32 v6, 10, v10
    v_lshl_add_u32 v6, v9, 4, v6
    s_lshl_b32 s36, s30, 21
    s_lshl_b32 s37, s32, 7
    s_add_u32 s36, s36, s37
    v_add_u32 v6, s36, v6
    v_add_u32 v7, 0x4000, v6
    s_waitcnt lgkmcnt(0)
    s_cmp_eq_u32 s30, 0
    s_cselect_b32 s8, s4, s6
    s_cselect_b32 s9, s5, s7
    s_and_b32 s9, s9, 0xffff
    s_mov_b32 s10, 0x800000
    s_mov_b32 s11, 0x00020000
    """)
    A("""
    s_lshl_b32 s36, s30, 21
    s_lshl_b32 s37, s32, 18
    s_add_u32 s36, s36, s37
    s_add_u32 s16, s12, s36
    s_addc_u32 s17, s13, 0
    s_and_b32 s17, s17, 0xffff
    s_mov_b32 s18, 0x40000
    s_mov_b32 s19, 0x00020000
    """)
    srd_off(A, 20, 12, WS_P, 4 << 20)
    for st in range(NS):
        A(f"s_add_u32 s{40 + st}, s35, {st * 8192}")
    ACC = 16
    CF = 48
    EF = CF + NS * 16
    KS = 32

    def issue(step):
        st = step % NS
        A(f"s_mov_b32 m0, s{40 + st}")
        A(f"s_mov_b32 s38, {step * 8192}")
        A(f"s_mov_b32 s39, {step * 128}")
        A("buffer_load_dwordx4 v4, s[16:19], s38 offen lds")
        A("buffer_load_dwordx4 v4, s[16:19], s38 offen offset:1024 lds")
        for nt in range(2):
            for ks in range(2):
                A(f"buffer_load_dwordx4 {vr(CF + st * 16 + (nt * 2 + ks) * 4, 4)}, v{2 + nt}, s[8:11], s39 offen offset:{ks * 64}")

    for s in range(NS - 1):
        issue(s)
    for i in range(KS):
        st = i % NS
        n = 6 * (min(i + NS - 2, KS - 1) - i)
        A(f"s_waitcnt vmcnt({n})")
        A("s_barrier")
        for ks in range(2):
            for mt in range(4):
                A(f"ds_read_b128 {vr(EF + (ks * 4 + mt) * 4, 4)}, v5 offset:{st * 8192 + mt * 2048 + ks * 1024}")
        if i + NS - 1 < KS:
            issue(i + NS - 1)
        for ks in range(2):
            A(f"s_waitcnt lgkmcnt({4 - 4 * ks})")
            for mt in range(4):
                for nt in range(2):
                    acc = vr(ACC + (mt * 2 + nt) * 4, 4)
                    a = vr(EF + (ks * 4 + mt) * 4, 4)
                    b = vr(CF + st * 16 + (nt * 2 + ks) * 4, 4)
                    cc = "0" if (i == 0 and ks == 0) else acc
                    A(f"v_mfma_f32_16x16x32_bf16 {acc}, {a}, {b}, {cc}")
    A("s_nop 7")
    A("s_nop 1")
    for nt in range(2):
        for grp in range(2):
            o = EF + (nt * 2 + grp) * 4
            t0 = ACC + ((2 * grp) * 2 + nt) * 4
            t1 = ACC + ((2 * grp + 1) * 2 + nt) * 4
            A(f"v_cvt_pk_bf16_f32 v{o}, v{t0}, v{t0 + 1}")
            A(f"v_cvt_pk_bf16_f32 v{o + 1}, v{t0 + 2}, v{t0 + 3}")
            A(f"v_cvt_pk_bf16_f32 v{o + 2}, v{t1}, v{t1 + 1}")
            A(f"v_cvt_pk_bf16_f32 v{o + 3}, v{t1 + 2}, v{t1 + 3}")
            A(f"buffer_store_dwordx4 {vr(o, 4)}, v{6 + nt}, s[20:23], 0 offen offset:{grp * 64}")
    A.label("L_k2_end")
    A("s_endpgm")
    return name, kd(name, EF + 32), (256, 256, NS * 8192)


def unpack8(A, dst, src):
    for j in range(4):
        A(f"v_lshlrev_b32 v{dst + 2 * j}, 16, v{src + j}")
        A(f"v_and_b32 v{dst + 2 * j + 1}, 0xffff0000, v{src + j}")


def pack8(A, dst, src):
    for j in range(4):
        A(f"v_cvt_pk_bf16_f32 v{dst + j}, v{src + 2 * j}, v{src + 2 * j + 1}")


def gen_k3(A):
    name = "k3_ln_kernel"
    kernel_header(A, name)
    A("""
    s_cmp_ge_u32 s2, 512
    s_cbranch_scc1 L_k3_end
    s_load_dwordx2 s[4:5], s[0:1], 0
    s_load_dwordx2 s[6:7], s[0:1], 48
    s_load_dwordx2 s[8:9], s[0:1], 80
    s_load_dwordx2 s[12:13], s[0:1], 96
    v_and_b32 v1, 63, v0
    v_lshrrev_b32 v2, 6, v0
    s_lshl_b32 s3, s2, 2
    v_add_u32 v2, s3, v2
    v_lshlrev_b32 v3, 4, v1
    v_lshl_add_u32 v4, v2, 10, v3
    s_waitcnt lgkmcnt(0)
    """)
    srd(A, 16, 4, 2 << 20)
    srd(A, 20, 6, 1024)
    srd(A, 24, 8, 2 << 20)
    srd_off(A, 28, 12, WS_P, 7 << 20)
    A("""
    s_mov_b32 s32, 0x200000
    s_mov_b32 s33, 0x400000
    buffer_load_dwordx4 v[8:11], v4, s[28:31], 0 offen
    buffer_load_dwordx4 v[12:15], v4, s[28:31], s32 offen
    buffer_load_dwordx4 v[16:19], v4, s[16:19], 0 offen
    buffer_load_dwordx4 v[20:23], v3, s[20:23], 0 offen
    s_waitcnt vmcnt(2)
    """)
    unpack8(A, 24, 8)
    unpack8(A, 32, 12)
    for j in range(8):
        A(f"v_sub_f32 v{24 + j}, v{24 + j}, v{32 + j}")
    pack8(A, 8, 24)
    unpack8(A, 24, 8)
    A("s_waitcnt vmcnt(1)")
    unpack8(A, 32, 16)
    for j in range(8):
        A(f"v_add_f32 v{24 + j}, v{24 + j}, v{32 + j}")
    pack8(A, 8, 24)
    unpack8(A, 24, 8)
    A("""
    v_add_f32 v5, v24, v25
    v_add_f32 v6, v26, v27
    v_add_f32 v5, v5, v28
    v_add_f32 v6, v6, v29
    v_add_f32 v5, v5, v30
    v_add_f32 v6, v6, v31
    v_add_f32 v5, v5, v6
    """)
    wave_sum(A, 5, 6)
    A("v_mul_f32 v5, 0x3b000000, v5")
    for j in range(8):
        A(f"v_sub_f32 v{32 + j}, v{24 + j}, v5")
    A("v_mul_f32 v6, v32, v32")
    for j in range(1, 8):
        A(f"v_fmac_f32 v6, v{32 + j}, v{32 + j}")
    wave_sum(A, 6, 7)
    A("v_mul_f32 v6, 0x3b000000, v6")
    bf16_round(A, 6)
    A("v_add_f32 v6, 0x3727c5ac, v6")
    bf16_round(A, 6)
    A("v_sqrt_f32 v6, v6")
    A("s_nop 0")
    bf16_round(A, 6)
    A("v_rcp_f32 v6, v6")
    bf16_round(A, 5)
    for j in range(8):
        A(f"v_sub_f32 v{32 + j}, v{24 + j}, v5")
    pack8(A, 12, 32)
    unpack8(A, 32, 12)
    for j in range(8):
        A(f"v_mul_f32 v{32 + j}, v{32 + j}, v6")
    pack8(A, 12, 32)
    unpack8(A, 32, 12)
    A("buffer_store_dwordx4 v[12:15], v4, s[28:31], s33 offen")
    for j in range(8):
        A(f"v_add_f32 v{40 + j}, v{24 + j}, v{32 + j}")
    pack8(A, 16, 40)
    A("buffer_store_dwordx4 v[16:19], v4, s[24:27], 0 offen")
    A("s_waitcnt vmcnt(2)")
    unpack8(A, 40, 20)
    A("v_mul_f32 v7, v32, v40")
    for j in range(1, 8):
        A(f"v_fmac_f32 v7, v{32 + j}, v{40 + j}")
    wave_sum(A, 7, 6)
    A("""
    v_cvt_pk_bf16_f32 v7, v7, v7
    v_and_b32 v7, 0xffff, v7
    v_xor_b32 v5, 0xffff, v7
    v_or_b32 v6, 0x8000, v7
    v_cmp_lt_u32 vcc, 0x7fff, v7
    s_nop 1
    v_cndmask_b32 v7, v6, v5, vcc
    v_lshlrev_b32 v7, 16, v7
    v_sub_u32 v5, 0x7ff, v2
    v_or_b32 v7, v7, v5
    v_lshlrev_b32 v5, 2, v2
    v_add_u32 v5, 0x600000, v5
    v_cmp_eq_u32 vcc, 0, v1
    s_and_saveexec_b64 s[34:35], vcc
    buffer_store_dword v7, v5, s[28:31], 0 offen
    """)
    A.label("L_k3_end")
    A("s_endpgm")
    return name, kd(name, 48), (512, 256, 0)


def topk_rounds(A, keys, tmp, out_s, nrows, sW):
    w1 = sW[0]
    A(f"s_mov_b32 s{w1}, -1")
    for rnd, so in enumerate(out_s):
        for k, t in zip(keys, tmp):
            A(f"v_sub_u32 v{t}, s{w1}, v{k}")
        ts = list(tmp)
        m = ts[0]
        rest = ts[1:]
        while rest:
            if len(rest) >= 2:
                A(f"v_min3_u32 v{m}, v{m}, v{rest[0]}, v{rest[1]}")
                rest = rest[2:]
            else:
                A(f"v_min_u32 v{m}, v{m}, v{rest[0]}")
                rest = rest[1:]
        row_reduce(A, "v_min_u32", m)
        A("s_nop 0")
        for r in range(nrows):
            A(f"v_readlane_b32 s{sW[1 + r]}, v{m}, {16 * r}")
        A("s_nop 0")
        for r in range(1, nrows):
            A(f"s_min_u32 s{sW[1]}, s{sW[1]}, s{sW[1 + r]}")
        A(f"s_sub_u32 s{so}, s{w1}, s{sW[1]}")
        A(f"s_sub_u32 s{w1}, s{so}, 1")
        A("s_nop 0")


def gen_k4(A):
    name = "k4_up_kernel"
    kernel_header(A, name)
    A("""
    s_cmp_ge_u32 s2, 112
    s_cbranch_scc1 L_k4_end
    s_load_dwordx4 s[4:7], s[0:1], 56
    s_load_dwordx2 s[12:13], s[0:1], 96
    v_and_b32 v1, 63, v0
    v_lshrrev_b32 v2, 6, v0
    s_nop 0
    v_readfirstlane_b32 s33, v2
    v_lshrrev_b32 v3, 1, v1
    s_lshl_b32 s34, s33, 7
    v_add_u32 v3, s34, v3
    s_movk_i32 s35, 3584
    v_mul_lo_u32 v3, v3, s35
    v_and_b32 v4, 1, v1
    v_lshl_add_u32 v3, v4, 4, v3
    s_lshl_b32 s35, s2, 5
    v_add_u32 v3, s35, v3
    v_lshlrev_b32 v4, 5, v0
    s_waitcnt lgkmcnt(0)
    """)
    srd(A, 16, 4, 512 * 1792 * 2)
    srd(A, 20, 6, 512 * 1792 * 2)
    srd_off(A, 24, 12, WS_HN, 3 << 20)
    A("s_mov_b32 s36, 0x200000")
    A("buffer_load_dwordx4 v[16:19], v4, s[24:27], s36 offen")
    A("buffer_load_dwordx4 v[20:23], v4, s[24:27], s36 offen offset:16")
    A("s_lshl_b32 s37, s33, 12")
    for mat in range(2):
        for i in range(4):
            A(f"s_add_u32 s38, s37, {mat * 16384 + i * 1024}")
            A("s_mov_b32 m0, s38")
            A(f"s_mov_b32 s39, {i * 32 * 3584}")
            A(f"buffer_load_dwordx4 v3, {sr(16 + mat * 4, 4)}, s39 offen lds")
    A("s_waitcnt vmcnt(8)")
    topk_rounds(A, list(range(16, 24)), list(range(24, 32)), list(range(48, 56)), 4, [56, 57, 58, 59, 60])
    A("v_mov_b32 v5, 0")
    for c in range(8):
        A(f"v_writelane_b32 v5, s{48 + c}, {c}")
    A("""
    s_lshl_b32 s38, s33, 5
    s_add_u32 s38, s38, 32768
    v_lshlrev_b32 v6, 2, v1
    v_add_u32 v7, s38, v6
    s_mov_b64 exec, 0xff
    ds_write_b32 v7, v5
    s_mov_b64 exec, -1
    s_waitcnt lgkmcnt(0)
    s_barrier
    v_and_b32 v7, 31, v1
    v_lshlrev_b32 v7, 2, v7
    ds_read_b32 v16, v7 offset:32768
    s_waitcnt lgkmcnt(0)
    """)
    topk_rounds(A, [16], [24], list(range(48, 56)), 2, [56, 57, 58, 59, 60])
    A("v_mov_b32 v5, 0")
    for c in range(8):
        A(f"v_writelane_b32 v5, s{48 + c}, {c}")
    A("""
    v_and_b32 v7, 7, v1
    v_lshlrev_b32 v7, 2, v7
    ds_bpermute_b32 v8, v7, v5
    s_waitcnt lgkmcnt(0)
    """)
    A(f"""
    s_or_b32 s38, s2, s33
    s_cmp_lg_u32 s38, 0
    s_cbranch_scc1 L_k4_nosel
    v_add_u32 v9, {WS_SEL - WS_HN}, v6
    s_mov_b64 exec, 0xff
    buffer_store_dword v5, v9, s[24:27], 0 offen
    s_mov_b64 exec, -1
    """)
    A.label("L_k4_nosel")
    A("""
    v_and_b32 v8, 0x7ff, v8
    v_sub_u32 v8, 0x7ff, v8
    v_lshlrev_b32 v8, 10, v8
    v_lshrrev_b32 v9, 4, v1
    v_lshl_add_u32 v8, v9, 3, v8
    s_lshl_b32 s38, s33, 8
    v_add_u32 v8, s38, v8
    """)
    AF = 32
    for c in range(4):
        A(f"buffer_load_dwordx2 {vr(AF + c * 4, 2)}, v8, s[24:27], 0 offen offset:{c * 64}")
        A(f"buffer_load_dwordx2 {vr(AF + c * 4 + 2, 2)}, v8, s[24:27], 0 offen offset:{c * 64 + 32}")
    A("""
    v_lshlrev_b32 v10, 3, v1
    v_add_u32 v10, s37, v10
    s_waitcnt vmcnt(0)
    """)
    BF = 48
    for mat in range(2):
        for c in range(4):
            b = BF + (mat * 4 + c) * 4
            A(f"ds_read_b64_tr_b16 {vr(b, 2)}, v10 offset:{mat * 16384 + c * 1024}")
            A(f"ds_read_b64_tr_b16 {vr(b + 2, 2)}, v10 offset:{mat * 16384 + c * 1024 + 512}")
    A("s_waitcnt lgkmcnt(0)")
    for c in range(4):
        for mat in range(2):
            acc = vr(80 + mat * 4, 4)
            cc = "0" if c == 0 else acc
            A(f"v_mfma_f32_16x16x32_bf16 {acc}, {vr(AF + c * 4, 4)}, {vr(BF + (mat * 4 + c) * 4, 4)}, {cc}")
    A("""
    s_lshl_b32 s38, s33, 10
    s_add_u32 s38, s38, 33024
    v_lshlrev_b32 v11, 4, v1
    v_add_u32 v12, s38, v11
    s_nop 7
    s_mov_b64 exec, 0xffffffff
    ds_write_b128 v12, v[80:83]
    ds_write_b128 v12, v[84:87] offset:512
    s_mov_b64 exec, -1
    s_waitcnt lgkmcnt(0)
    s_barrier
    s_cmp_lg_u32 s33, 0
    s_cbranch_scc1 L_k4_end
    s_mov_b64 exec, 0xffffffff
    """)
    for w in range(4):
        for mat in range(2):
            A(f"ds_read_b128 {vr(48 + (w * 2 + mat) * 4, 4)}, v11 offset:{33024 + w * 1024 + mat * 512}")
    A("s_waitcnt lgkmcnt(0)")
    for mat in range(2):
        for r in range(4):
            d = 48 + mat * 4 + r
            A(f"v_add_f32 v{d}, v{d}, v{d + 8}")
            A(f"v_add_f32 v{d + 16}, v{d + 16}, v{d + 24}")
            A(f"v_add_f32 v{d}, v{d}, v{d + 16}")
            bf16_round(A, d)
    for r in range(4):
        g = 48 + r
        u = 52 + r
        t = 56 + r
        A(f"v_mul_f32 v{t}, 0xbfb8aa3b, v{g}")
        A(f"v_exp_f32 v{t}, v{t}")
        A("s_nop 0")
        A(f"v_add_f32 v{t}, 1.0, v{t}")
        A(f"v_rcp_f32 v{t}, v{t}")
        A("s_nop 0")
        A(f"v_mul_f32 v{g}, v{g}, v{t}")
        bf16_round(A, g)
        A(f"v_mul_f32 v{g}, v{g}, v{u}")
        A(f"v_cvt_pk_bf16_f32 v{g}, v{g}, v{g}")
    A(f"""
    v_lshrrev_b32 v9, 4, v1
    s_movk_i32 s38, 3584*4
    v_mul_lo_u32 v9, v9, s38
    v_and_b32 v10, 15, v1
    v_lshl_add_u32 v9, v10, 1, v9
    s_lshl_b32 s38, s2, 5
    s_add_u32 s38, s38, {WS_ACT - WS_HN}
    v_add_u32 v9, s38, v9
    """)
    for r in range(4):
        A(f"s_mov_b32 s39, {r * 3584}")
        A(f"buffer_store_short v{48 + r}, v9, s[24:27], s39 offen")
    A.label("L_k4_end")
    A("s_endpgm")
    return name, kd(name, 96), (112, 256, 33024 + 4096)


def gen_k5(A):
    name = "k5_down_kernel"
    kernel_header(A, name)
    A("""
    s_cmp_ge_u32 s2, 32
    s_cbranch_scc1 L_k5_end
    s_load_dwordx2 s[4:5], s[0:1], 0
    s_load_dwordx4 s[8:11], s[0:1], 72
    s_load_dwordx2 s[12:13], s[0:1], 96
    v_and_b32 v1, 63, v0
    v_lshrrev_b32 v2, 6, v0
    s_nop 0
    v_readfirstlane_b32 s33, v2
    s_mul_i32 s34, s33, 448
    v_lshrrev_b32 v3, 1, v1
    v_add_u32 v3, s34, v3
    v_lshlrev_b32 v3, 10, v3
    v_and_b32 v4, 1, v1
    v_lshl_add_u32 v3, v4, 4, v3
    s_lshl_b32 s35, s2, 5
    v_add_u32 v3, s35, v3
    s_waitcnt lgkmcnt(0)
    """)
    srd(A, 16, 8, 1792 * 512 * 2)
    srd(A, 20, 10, 2 << 20)
    srd(A, 24, 4, 2 << 20)
    srd_off(A, 28, 12, WS_P, 7 << 20)
    A(f"""
    v_lshrrev_b32 v9, 4, v1
    v_and_b32 v9, 1, v9
    v_lshlrev_b32 v9, 4, v9
    v_add_u32 v9, {WS_SEL - WS_P}, v9
    buffer_load_dwordx4 v[12:15], v9, s[28:31], 0 offen
    s_mul_i32 s37, s33, 14*1024
    """)
    for i in range(14):
        A(f"s_add_u32 s38, s37, {i * 1024}")
        A("s_mov_b32 m0, s38")
        A(f"s_mov_b32 s39, {i * 32 * 1024}")
        A("buffer_load_dwordx4 v3, s[16:19], s39 offen lds")
    A(f"""
    v_and_b32 v5, 7, v1
    s_movk_i32 s38, 3584
    v_mul_lo_u32 v5, v5, s38
    v_lshrrev_b32 v6, 4, v1
    v_lshl_add_u32 v5, v6, 3, v5
    s_lshl_b32 s38, s34, 1
    s_add_u32 s38, s38, {WS_ACT - WS_P}
    v_add_u32 v5, s38, v5
    """)
    AF = 32
    for c in range(14):
        A(f"buffer_load_dwordx2 {vr(AF + c * 4, 2)}, v5, s[28:31], 0 offen offset:{c * 64}")
        A(f"buffer_load_dwordx2 {vr(AF + c * 4 + 2, 2)}, v5, s[28:31], 0 offen offset:{c * 64 + 32}")
    A("s_waitcnt vmcnt(42)")
    A("""
    v_and_b32 v10, 15, v1
    v_lshlrev_b32 v10, 1, v10
    v_add_u32 v10, s35, v10
    s_mov_b32 s40, 0x200000
    s_mov_b32 s41, 0x400000
    """)
    for r in range(4):
        A(f"v_and_b32 v{16 + r}, 0x7ff, v{12 + r}")
        A(f"v_sub_u32 v{16 + r}, 0x7ff, v{16 + r}")
        A(f"v_lshl_add_u32 v{16 + r}, v{16 + r}, 10, v10")
    G = 144
    for r in range(4):
        A(f"buffer_load_ushort v{G + r}, v{16 + r}, s[28:31], 0 offen")
        A(f"buffer_load_ushort v{G + 4 + r}, v{16 + r}, s[28:31], s40 offen")
        A(f"buffer_load_ushort v{G + 8 + r}, v{16 + r}, s[28:31], s41 offen")
        A(f"buffer_load_ushort v{G + 12 + r}, v{16 + r}, s[24:27], 0 offen")
    A("""
    v_lshlrev_b32 v7, 3, v1
    v_add_u32 v7, s37, v7
    s_waitcnt vmcnt(16)
    """)
    BF = 88
    for c in range(14):
        b = BF + c * 4
        A(f"ds_read_b64_tr_b16 {vr(b, 2)}, v7 offset:{c * 1024}")
        A(f"ds_read_b64_tr_b16 {vr(b + 2, 2)}, v7 offset:{c * 1024 + 512}")
    A("s_waitcnt lgkmcnt(0)")
    for c in range(14):
        acc = vr(20 + (c & 1) * 4, 4)
        cc = "0" if c < 2 else acc
        A(f"v_mfma_f32_16x16x32_bf16 {acc}, {vr(AF + c * 4, 4)}, {vr(BF + c * 4, 4)}, {cc}")
    RED = 57344
    A(f"""
    s_lshl_b32 s38, s33, 9
    s_add_u32 s38, s38, {RED}
    v_lshlrev_b32 v11, 4, v1
    v_add_u32 v8, s38, v11
    s_nop 7
    """)
    for r in range(4):
        A(f"v_add_f32 v{20 + r}, v{20 + r}, v{24 + r}")
    A("""
    s_mov_b64 exec, 0xffffffff
    ds_write_b128 v8, v[20:23]
    s_mov_b64 exec, -1
    s_waitcnt lgkmcnt(0)
    s_barrier
    s_cmp_lg_u32 s33, 0
    s_cbranch_scc1 L_k5_end
    s_mov_b64 exec, 0xffffffff
    """)
    for w in range(4):
        A(f"ds_read_b128 {vr(32 + w * 4, 4)}, v11 offset:{RED + w * 512}")
    A("s_waitcnt vmcnt(0) lgkmcnt(0)")
    for r in range(4):
        d = 32 + r
        A(f"v_add_f32 v{d}, v{d}, v{d + 4}")
        A(f"v_add_f32 v{d + 8}, v{d + 8}, v{d + 12}")
        A(f"v_add_f32 v{d}, v{d}, v{d + 8}")
        bf16_round(A, d)
        k = 12 + r
        t = 48
        A(f"v_lshrrev_b32 v{t}, 16, v{k}")
        A(f"v_and_b32 v{t + 1}, 0x7fff, v{t}")
        A(f"v_xor_b32 v{t + 2}, 0xffff, v{t}")
        A(f"v_cmp_lt_u32 vcc, 0x7fff, v{t}")
        A("s_nop 1")
        A(f"v_cndmask_b32 v{t}, v{t + 2}, v{t + 1}, vcc")
        A(f"v_lshlrev_b32 v{t}, 16, v{t}")
        A(f"v_mul_f32 v{t}, 0xbfb8aa3b, v{t}")
        A(f"v_exp_f32 v{t}, v{t}")
        A("s_nop 0")
        A(f"v_add_f32 v{t}, 1.0, v{t}")
        A(f"v_rcp_f32 v{t}, v{t}")
        A("s_nop 0")
        bf16_round(A, t)
        A(f"v_mul_f32 v{d}, v{d}, v{t}")
        bf16_round(A, d)
        p, q, hn, x = G + r, G + 4 + r, G + 8 + r, G + 12 + r
        for z in (p, q, hn, x):
            A(f"v_lshlrev_b32 v{z}, 16, v{z}")
        A(f"v_sub_f32 v{p}, v{p}, v{q}")
        bf16_round(A, p)
        A(f"v_add_f32 v{p}, v{p}, v{x}")
        bf16_round(A, p)
        A(f"v_add_f32 v{hn}, v{hn}, v{d}")
        bf16_round(A, hn)
        A(f"v_add_f32 v{p}, v{p}, v{hn}")
        A(f"v_cvt_pk_bf16_f32 v{p}, v{p}, v{p}")
        A(f"buffer_store_short v{p}, v{16 + r}, s[20:23], 0 offen")
    A.label("L_k5_end")
    A("s_endpgm")
    return name, kd(name, 160), (32, 256, RED + 2048)


HEADER = """; Generated by dev/gen.py -- 5-launch list:
"""


def main():
    A = Asm()
    gens = [gen_k1, gen_k2, gen_k3, gen_k4, gen_k5]
    kds = []
    launches = []
    for g in gens:
        name, kdtext, (grid, block, lds) = g(A)
        kds.append(kdtext)
        launches.append(f"; @launch kernel={name} grid=({grid},1,1) block=({block},1,1) lds={lds}")
    out = HEADER + "\n".join(launches) + "\n"
    out += '.amdgcn_target "amdgcn-amd-amdhsa--gfx950"\n.text\n'
    out += A.text()
    out += '.section .rodata,"a"\n' + "".join(kds)
    path = sys.argv[1] if len(sys.argv) > 1 else f"cdna_kernels/{NAME}.s"
    open(path, "w").write(out)


if __name__ == "__main__":
    main()
```

```python
import sys

NAME = "sequential_preLN__spectral_fnet__moe_arch_mod__prompt"

WS_BF = 0
WS_P = 4 << 20
WS_Q = 6 << 20
WS_HN = 8 << 20
WS_KEYS = 10 << 20
WS_ACT = (10 << 20) + 65536
WS_SEL = (10 << 20) + 131072
WS_TOTAL = 11 << 20


class Asm:
    def __init__(self):
        self.lines = []

    def __call__(self, s):
        for ln in s.strip("\n").split("\n"):
            ln = ln.strip()
            if ln:
                self.lines.append("    " + ln)

    def label(self, s):
        self.lines.append(s + ":")

    def raw(self, s):
        self.lines.append(s)

    def text(self):
        return "\n".join(self.lines) + "\n"


def vr(a, n):
    return f"v[{a}:{a + n - 1}]"


def sr(a, n):
    return f"s[{a}:{a + n - 1}]"


def srd(A, d, base, nbytes):
    A(f"s_mov_b32 s{d}, s{base}")
    A(f"s_and_b32 s{d + 1}, s{base + 1}, 0xffff")
    A(f"s_mov_b32 s{d + 2}, {nbytes:#x}")
    A(f"s_mov_b32 s{d + 3}, 0x00020000")


def srd_off(A, d, base, off, nbytes):
    A(f"s_add_u32 s{d}, s{base}, {off:#x}")
    A(f"s_addc_u32 s{d + 1}, s{base + 1}, 0")
    A(f"s_and_b32 s{d + 1}, s{d + 1}, 0xffff")
    A(f"s_mov_b32 s{d + 2}, {nbytes:#x}")
    A(f"s_mov_b32 s{d + 3}, 0x00020000")


DPP = "row_mask:0xf bank_mask:0xf"


def row_reduce(A, op, v):
    A("s_nop 1")
    A(f"{op}_dpp v{v}, v{v}, v{v} quad_perm:[1,0,3,2] {DPP}")
    A("s_nop 1")
    A(f"{op}_dpp v{v}, v{v}, v{v} quad_perm:[2,3,0,1] {DPP}")
    A("s_nop 1")
    A(f"{op}_dpp v{v}, v{v}, v{v} row_half_mirror {DPP}")
    A("s_nop 1")
    A(f"{op}_dpp v{v}, v{v}, v{v} row_mirror {DPP}")


def cross_rows_sum(A, v, tmp):
    A(f"v_mov_b32 v{tmp}, v{v}")
    A("s_nop 1")
    A(f"v_permlane16_swap_b32 v{v}, v{tmp}")
    A("s_nop 1")
    A(f"v_add_f32 v{v}, v{v}, v{tmp}")
    A(f"v_mov_b32 v{tmp}, v{v}")
    A("s_nop 1")
    A(f"v_permlane32_swap_b32 v{v}, v{tmp}")
    A("s_nop 1")
    A(f"v_add_f32 v{v}, v{v}, v{tmp}")


def wave_sum(A, v, tmp):
    row_reduce(A, "v_add_f32", v)
    cross_rows_sum(A, v, tmp)


def bf16_round(A, v):
    A(f"v_cvt_pk_bf16_f32 v{v}, v{v}, v{v}")
    A(f"v_lshlrev_b32 v{v}, 16, v{v}")


STAMPS = False
WS_STAMP = 12 << 20


def stamp(A, i):
    if STAMPS:
        A(f"s_memtime s[90:91]")
        A("s_waitcnt lgkmcnt(0)")
        A(f"s_mov_b32 s{64 + i}, s90")


def stamp_dump(A, n, kidx, ws_lo):
    if STAMPS:
        A("s_mov_b64 exec, -1")
        A("v_mov_b32 v1, 0")
        for i in range(n):
            A(f"s_sub_u32 s91, s{64 + i}, s64")
            A(f"v_writelane_b32 v1, s91, {i}")
        A(f"s_add_u32 s92, s{ws_lo}, {WS_STAMP + kidx * (1 << 18):#x}")
        A(f"s_addc_u32 s93, s{ws_lo + 1}, 0")
        A("s_and_b32 s93, s93, 0xffff")
        A("s_mov_b32 s94, 0x40000")
        A("s_mov_b32 s95, 0x00020000")
        A("v_lshlrev_b32 v2, 2, v0")
        A("s_lshl_b32 s91, s2, 10")
        A("v_add_u32 v2, s91, v2")
        A("buffer_store_dword v1, v2, s[92:95], 0 offen")


def kernel_header(A, name):
    A.raw(f".globl {name}")
    A.raw(".p2align 8")
    A.raw(f".type {name},@function")
    A.label(name)


def kd(name, vgpr, sgpr=96):
    acc = (vgpr + 3) // 4 * 4
    return f""".p2align 6
.amdhsa_kernel {name}
  .amdhsa_next_free_vgpr {vgpr}
  .amdhsa_next_free_sgpr {sgpr}
  .amdhsa_accum_offset {acc}
  .amdhsa_group_segment_fixed_size 0
  .amdhsa_kernarg_size 104
  .amdhsa_user_sgpr_count 2
  .amdhsa_user_sgpr_kernarg_segment_ptr 1
  .amdhsa_system_sgpr_workgroup_id_x 1
  .amdhsa_float_denorm_mode_32 3
.end_amdhsa_kernel
"""


def gen_k1(A):
    name = "k1_lngemm_kernel"
    kernel_header(A, name)
    A("""
    s_cmp_ge_u32 s2, 256
    s_cbranch_scc1 L_k1_end
    """)
    stamp(A, 0)
    A("""
    s_load_dwordx2 s[4:5], s[0:1], 0
    s_load_dwordx8 s[44:51], s[0:1], 8
    s_load_dwordx2 s[12:13], s[0:1], 96
    s_and_b32 s27, s2, 7
    s_lshr_b32 s26, s2, 3
    s_lshr_b32 s30, s26, 3
    s_lshl_b32 s28, s27, 2
    s_add_u32 s28, s28, s30
    s_and_b32 s29, s26, 7
    v_and_b32 v1, 63, v0
    v_lshrrev_b32 v2, 6, v0
    s_nop 0
    v_readfirstlane_b32 s30, v2
    s_and_b32 s32, s30, 1
    s_lshr_b32 s31, s30, 1
    """)
    WL = 32768
    A("""
    v_and_b32 v8, 15, v1
    v_lshrrev_b32 v9, 4, v1
    v_lshlrev_b32 v10, 4, v1
    """)
    A("""
    s_lshl_b32 s33, s28, 6
    s_lshl_b32 s34, s30, 3
    s_add_u32 s33, s33, s34
    v_add_u32 v2, s33, v9
    v_lshlrev_b32 v2, 10, v2
    v_lshl_add_u32 v2, v8, 4, v2
    """)
    A("""
    s_lshl_b32 s33, s32, 7
    v_xor_b32 v4, s33, v10
    s_and_b32 s33, s29, 3
    s_lshl_b32 s33, s33, 7
    s_lshl_b32 s34, s30, 4
    s_add_u32 s33, s33, s34
    s_lshl_b32 s33, s33, 10
    s_lshl_b32 s34, s30, 14
    """)
    A(f"s_add_u32 s34, s34, {WL}")
    A("""
    s_lshr_b32 s35, s27, 1
    s_lshl_b32 s35, s35, 21
    s_lshl_b32 s36, s26, 16
    s_add_u32 s35, s35, s36
    s_lshl_b32 s36, s30, 13
    s_add_u32 s35, s35, s36
    v_lshlrev_b32 v5, 7, v1
    v_add_u32 v5, s35, v5
    """)
    A("""
    s_and_b32 s37, s29, 3
    s_lshl_b32 s37, s37, 1
    s_lshr_b32 s38, s30, 2
    s_add_u32 s37, s37, s38
    s_lshr_b32 s36, s29, 2
    s_lshl_b32 s35, s36, 21
    s_lshl_b32 s37, s37, 18
    s_add_u32 s35, s35, s37
    s_lshl_b32 s37, s28, 13
    s_add_u32 s35, s35, s37
    s_and_b32 s37, s31, 1
    s_lshl_b32 s37, s37, 12
    s_add_u32 s35, s35, s37
    s_lshl_b32 s37, s32, 10
    s_add_u32 s35, s35, s37
    v_add_u32 v3, s35, v10
    s_waitcnt lgkmcnt(0)
    """)
    srd(A, 16, 4, 2048 * 512 * 2)
    A("""
    s_cmp_eq_u32 s36, 0
    s_cselect_b32 s20, s48, s50
    s_cselect_b32 s21, s49, s51
    s_and_b32 s21, s21, 0xffff
    s_mov_b32 s22, 0x80000
    s_mov_b32 s23, 0x00020000
    s_and_b32 s37, s27, 1
    s_cmp_eq_u32 s37, 0
    s_cselect_b32 s52, s44, s46
    s_cselect_b32 s53, s45, s47
    s_and_b32 s53, s53, 0xffff
    s_mov_b32 s54, 0x800000
    s_mov_b32 s55, 0x00020000
    """)
    srd_off(A, 56, 12, WS_BF, 4 << 20)
    XB = 64
    for g in range(2):
        A(f"s_mov_b32 s38, {g * 4096}")
        for j in range(4):
            A(f"buffer_load_dwordx4 {vr(XB + (g * 4 + j) * 4, 4)}, v2, s[16:19], s38 offen offset:{j * 256}")
    for r4 in range(4):
        A(f"s_add_u32 s40, s34, {r4 * 4096}")
        A("s_mov_b32 m0, s40")
        A(f"s_add_u32 s41, s33, {r4 * 4096}")
        for rr in range(4):
            r = r4 * 4 + rr
            f = ((r >> 3) * 4 + (r & 3)) * 16
            A(f"v_xor_b32 v{12 + rr}, {f:#x}, v4")
            A(f"buffer_load_dwordx4 v{12 + rr}, s[20:23], s41 offen offset:{rr * 1024} lds")
    pfn = [0]

    def pf(k):
        n = pfn[0]
        pfn[0] += 1
        A(f"s_cmp_lg_u32 s30, {k}")
        A(f"s_cbranch_scc1 L_k1_pf{n}")
        A("buffer_load_dword v6, v5, s[52:55], 0 offen")
        A.label(f"L_k1_pf{n}")

    pf(0)
    stamp(A, 1)
    A("""
    s_and_b32 s40, s30, 3
    s_lshl_b32 s40, s40, 2
    v_add_u32 v14, s40, v9
    v_xor_b32 v14, v14, v8
    v_lshlrev_b32 v14, 4, v14
    s_lshl_b32 s40, s30, 3
    v_add_u32 v15, s40, v9
    v_lshl_add_u32 v16, v15, 9, v14
    v_add_u32 v17, 2048, v16
    """)
    A(f"""
    v_lshrrev_b32 v14, 2, v8
    v_lshlrev_b32 v14, 3, v14
    v_and_b32 v15, 3, v8
    v_add_u32 v14, v14, v15
    s_lshl_b32 s40, s32, 5
    v_add_u32 v15, s40, v14
    v_lshlrev_b32 v15, 9, v15
    s_lshl_b32 s40, s31, 5
    v_add_u32 v14, s40, v14
    v_lshlrev_b32 v14, 10, v14
    v_add_u32 v14, {WL}, v14
    """)
    for k3 in range(4):
        A(f"v_add_u32 v18, {k3 * 4}, v9")
        A("v_xor_b32 v18, v18, v8")
        A(f"v_lshl_add_u32 v{20 + k3}, v18, 4, v15")
        A(f"v_lshl_add_u32 v{24 + k3}, v18, 4, v14")
    A("v_mov_b32 v19, 0x3f803f80")
    A("s_waitcnt vmcnt(16)")
    stamp(A, 2)
    pf(1)
    T = 96
    NG = 2
    for g in range(NG):
        sm = 28 + g
        A(f"v_mov_b32 v{sm}, 0")
        for r in range(16):
            A(f"v_dot2_f32_bf16 v{sm}, v{XB + g * 16 + r}, v19, v{sm}")
    A("s_nop 1")
    for g in range(NG):
        row_reduce(A, "v_add_f32", 28 + g)
    for g in range(NG):
        sm = 28 + g
        mb = 32 + g
        A(f"v_mul_f32 v{sm}, 0x3b000000, v{sm}")
        A(f"v_mov_b32 v{mb}, v{sm}")
        bf16_round(A, mb)
        A(f"v_sub_f32 v{sm}, v{sm}, v{mb}")
    for g in range(NG):
        q0 = T + 8 + g * 2
        A(f"v_mov_b32 v{q0}, 0")
        A(f"v_mov_b32 v{q0 + 1}, 0")
        for r in range(16):
            x = XB + g * 16 + r
            t = T + 16 + (r & 3) * 2
            A(f"v_lshlrev_b32 v{t}, 16, v{x}")
            A(f"v_and_b32 v{t + 1}, 0xffff0000, v{x}")
            A(f"v_sub_f32 v{t}, v{t}, v{32 + g}")
            A(f"v_sub_f32 v{t + 1}, v{t + 1}, v{32 + g}")
            A(f"v_fmac_f32 v{q0}, v{t}, v{t}")
            A(f"v_fmac_f32 v{q0 + 1}, v{t + 1}, v{t + 1}")
            A(f"v_cvt_pk_bf16_f32 v{x}, v{t}, v{t + 1}")
        A(f"v_add_f32 v{36 + g}, v{q0}, v{q0 + 1}")
    pf(2)
    for g in range(NG):
        row_reduce(A, "v_add_f32", 36 + g)
    for g in range(NG):
        vv = 36 + g
        A(f"v_mul_f32 v{vv}, 0x3b000000, v{vv}")
        A(f"v_fma_f32 v{vv}, -v{28 + g}, v{28 + g}, v{vv}")
        A(f"v_max_f32 v{vv}, 0, v{vv}")
        bf16_round(A, vv)
        A(f"v_add_f32 v{vv}, 0x3727c5ac, v{vv}")
        bf16_round(A, vv)
        A(f"v_sqrt_f32 v{vv}, v{vv}")
        A("s_nop 0")
        bf16_round(A, vv)
        A(f"v_rcp_f32 v{T + g}, v{vv}")
    A("s_nop 0")
    for g in range(NG):
        for r in range(16):
            x = XB + g * 16 + r
            t = T + 16 + (r & 3) * 2
            A(f"v_lshlrev_b32 v{t}, 16, v{x}")
            A(f"v_and_b32 v{t + 1}, 0xffff0000, v{x}")
            A(f"v_mul_f32 v{t}, v{t}, v{T + g}")
            A(f"v_mul_f32 v{t + 1}, v{t + 1}, v{T + g}")
            A(f"v_cvt_pk_bf16_f32 v{x}, v{t}, v{t + 1}")
            if (r & 3) == 3 and (r >> 2) < 2:
                j = r >> 2
                A(f"ds_write_b128 v{16 + g}, {vr(XB + (g * 4 + j) * 4, 4)} offset:{j * 256}")
    pf(3)
    stamp(A, 3)
    ACC = 32
    FB = 96

    def rd_list(kc):
        fb = FB + (kc & 1) * 16
        kcl = kc & 7
        out = []
        for h in range(2):
            out.append(f"ds_read_b128 {vr(fb + h * 4, 4)}, v{20 + (kcl & 3)} offset:{h * 2048 + (kcl >> 2) * 256}")
        for i in range(2):
            out.append(f"ds_read_b128 {vr(fb + 8 + i * 4, 4)}, v{24 + (kc & 3)} offset:{i * 4096 + (kc >> 2) * 256}")
        return out

    A("""
    s_waitcnt vmcnt(1) lgkmcnt(0)
    s_cmp_lt_u32 s30, 4
    s_cbranch_scc1 L_k1_w1
    s_waitcnt vmcnt(0)
    """)
    A.label("L_k1_w1")
    A("s_barrier")
    stamp(A, 4)
    pf(4)
    for half in range(2):
        if half == 1:
            pf(6)
            A("s_barrier")
            for g in range(NG):
                for j in (2, 3):
                    A(f"ds_write_b128 v{16 + g}, {vr(XB + (g * 4 + j) * 4, 4)} offset:{(j - 2) * 256}")
            A("s_waitcnt lgkmcnt(0)")
            A("s_barrier")
        for ins in rd_list(half * 8):
            A(ins)
        for kcl in range(8):
            kc = half * 8 + kcl
            fb = FB + (kc & 1) * 16
            nxt = rd_list(kc + 1) if kcl < 7 else []
            for ins in nxt:
                A(ins)
            if kcl == 4:
                pf(5 + 2 * half)
            A(f"s_waitcnt lgkmcnt({len(nxt)})")
            for h in range(2):
                for ii in range(2):
                    acc = vr(ACC + (h * 2 + ii) * 4, 4)
                    a = vr(fb + h * 4, 4)
                    b = vr(fb + 8 + ii * 4, 4)
                    cc = "0" if kc == 0 else acc
                    A(f"v_mfma_f32_16x16x32_bf16 {acc}, {a}, {b}, {cc}")
    A("s_nop 7")
    A("s_nop 1")
    stamp(A, 5)
    for i in range(2):
        o = FB + i * 4
        t0 = ACC + (0 * 2 + i) * 4
        t1 = ACC + (1 * 2 + i) * 4
        A(f"v_cvt_pk_bf16_f32 v{o}, v{t0}, v{t0 + 1}")
        A(f"v_cvt_pk_bf16_f32 v{o + 1}, v{t0 + 2}, v{t0 + 3}")
        A(f"v_cvt_pk_bf16_f32 v{o + 2}, v{t1}, v{t1 + 1}")
        A(f"v_cvt_pk_bf16_f32 v{o + 3}, v{t1 + 2}, v{t1 + 3}")
        A(f"buffer_store_dwordx4 {vr(o, 4)}, v3, s[56:59], 0 offen offset:{i * 2048}")
    A("s_waitcnt vmcnt(0)") if STAMPS else None
    stamp(A, 6)
    stamp_dump(A, 7, 0, 12)
    A.label("L_k1_end")
    A("s_endpgm")
    return name, kd(name, 128), (256, 512, 163840)


def gen_k2(A, NS=6):
    name = "k2_gemm_kernel"
    kernel_header(A, name)
    A("""
    s_cmp_ge_u32 s2, 256
    s_cbranch_scc1 L_k2_end
    """)
    stamp(A, 0)
    A("""
    s_load_dwordx4 s[4:7], s[0:1], 8
    s_load_dwordx2 s[12:13], s[0:1], 96
    s_and_b32 s28, s2, 7
    s_lshr_b32 s29, s2, 3
    s_and_b32 s30, s28, 1
    s_lshr_b32 s31, s28, 1
    s_lshl_b32 s31, s31, 2
    s_lshr_b32 s32, s29, 3
    s_add_u32 s31, s31, s32
    s_and_b32 s32, s29, 7
    v_and_b32 v1, 63, v0
    v_lshrrev_b32 v2, 6, v0
    s_nop 0
    v_readfirstlane_b32 s33, v2
    """)
    SS = 24576
    A("""
    v_and_b32 v12, 15, v1
    v_lshrrev_b32 v13, 4, v1
    v_and_b32 v14, 7, v1
    v_lshrrev_b32 v15, 3, v1
    s_lshl_b32 s34, s31, 7
    s_lshl_b32 s35, s33, 5
    s_add_u32 s34, s34, s35
    v_add_u32 v2, s34, v15
    v_lshlrev_b32 v2, 12, v2
    v_xor_b32 v3, v14, v15
    v_lshl_add_u32 v8, v3, 4, v2
    """)
    for j in range(1, 4):
        A(f"v_add_u32 v{8 + j}, {j * 32768 - j * 1024:#x}, v8")
    A("""
    v_lshlrev_b32 v5, 4, v1
    s_lshl_b32 s35, s33, 11
    v_add_u32 v4, s35, v5
    """)
    A("""
    v_add_u32 v2, s34, v12
    v_lshlrev_b32 v6, 10, v2
    v_lshl_add_u32 v6, v13, 4, v6
    s_lshl_b32 s36, s30, 21
    s_lshl_b32 s37, s32, 7
    s_add_u32 s36, s36, s37
    v_add_u32 v6, s36, v6
    v_add_u32 v7, 0x4000, v6
    """)
    NH = (NS + 1) // 2
    A("""
    s_lshl_b32 s36, s33, 12
    v_lshlrev_b32 v2, 7, v12
    v_add_u32 v2, s36, v2
    v_xor_b32 v3, v13, v14
    v_lshl_add_u32 v16, v3, 4, v2
    v_xor_b32 v17, 64, v16
    v_add_u32 v18, 0x4000, v5
    """)
    for h in range(1, NH):
        for k in range(3):
            A(f"v_add_u32 v{16 + h * 3 + k}, {h * 2 * SS:#x}, v{16 + k}")
    A("""
    s_waitcnt lgkmcnt(0)
    s_cmp_eq_u32 s30, 0
    s_cselect_b32 s8, s4, s6
    s_cselect_b32 s9, s5, s7
    s_and_b32 s9, s9, 0xffff
    s_mov_b32 s10, 0x800000
    s_mov_b32 s11, 0x00020000
    """)
    A("""
    s_lshl_b32 s37, s30, 21
    s_lshl_b32 s38, s32, 18
    s_add_u32 s37, s37, s38
    s_add_u32 s16, s12, s37
    s_addc_u32 s17, s13, 0
    s_and_b32 s17, s17, 0xffff
    s_mov_b32 s18, 0x40000
    s_mov_b32 s19, 0x00020000
    s_add_u32 s37, s35, 16384
    """)
    srd_off(A, 20, 12, WS_P, 4 << 20)
    ACC = 32
    FB = 64
    KS = 32

    def issue_groups(step):
        st = step % NS
        g = []
        g.append([f"s_add_u32 s40, s36, {st * SS}", "s_mov_b32 m0, s40", f"s_mov_b32 s39, {step * 128}",
                  "buffer_load_dwordx4 v8, s[8:11], s39 offen lds"])
        for j in range(1, 4):
            g.append([f"buffer_load_dwordx4 v{8 + j}, s[8:11], s39 offen offset:{j * 1024} lds"])
        g.append([f"s_add_u32 s40, s37, {st * SS}", "s_mov_b32 m0, s40", f"s_mov_b32 s38, {step * 8192}",
                  "buffer_load_dwordx4 v4, s[16:19], s38 offen lds"])
        g.append(["buffer_load_dwordx4 v4, s[16:19], s38 offen offset:1024 lds"])
        return g

    def issue(step):
        for g in issue_groups(step):
            for ins in g:
                A(ins)

    def rd_list(step):
        st = step % NS
        h = st >> 1
        so = (st & 1) * SS
        fb = FB + (step & 1) * 48
        out = []
        for ks in range(2):
            for mt in range(4):
                out.append(f"ds_read_b128 {vr(fb + (ks * 4 + mt) * 4, 4)}, v{18 + h * 3} offset:{so + mt * 2048 + ks * 1024}")
            for nt in range(2):
                out.append(f"ds_read_b128 {vr(fb + 32 + (ks * 2 + nt) * 4, 4)}, v{16 + h * 3 + ks} offset:{so + nt * 2048}")
        return out

    def rd(step):
        for ins in rd_list(step):
            A(ins)

    stamp(A, 1)
    for s_ in range(NS):
        issue(s_)
    stamp(A, 2)
    A(f"s_waitcnt vmcnt({6 * (NS - 1)})")
    A("s_barrier")
    stamp(A, 3)
    rd(0)
    A("s_waitcnt lgkmcnt(0)")
    for i in range(KS):
        fb = FB + (i & 1) * 48
        if i + 1 < KS:
            last = min(i + NS - 1, KS - 1)
            A(f"s_waitcnt vmcnt({6 * (last - (i + 1))})")
            A("s_barrier")
            if i in (1, 2, 4, 8, 16, 24, 30):
                stamp(A, 4 + (1, 2, 4, 8, 16, 24, 30).index(i))
        reads = rd_list(i + 1) if i + 1 < KS else []
        groups = issue_groups(i + NS) if (i + 1 < KS and i + NS < KS) else []
        pos = [1, 3, 6, 8, 11, 13]
        n = 0
        for ks in range(2):
            for mt in range(4):
                for nt in range(2):
                    acc = vr(ACC + (mt * 2 + nt) * 4, 4)
                    a = vr(fb + (ks * 4 + mt) * 4, 4)
                    b = vr(fb + 32 + (ks * 2 + nt) * 4, 4)
                    cc = "0" if (i == 0 and ks == 0) else acc
                    A(f"v_mfma_f32_16x16x32_bf16 {acc}, {a}, {b}, {cc}")
                    if n < len(reads):
                        A(reads[n])
                    if groups and n in pos:
                        for ins in groups[pos.index(n)]:
                            A(ins)
                    n += 1
        if i + 1 < KS:
            A("s_waitcnt lgkmcnt(0)")
    A("s_nop 7")
    A("s_nop 1")
    for nt in range(2):
        for grp in range(2):
            o = FB + (nt * 2 + grp) * 4
            t0 = ACC + ((2 * grp) * 2 + nt) * 4
            t1 = ACC + ((2 * grp + 1) * 2 + nt) * 4
            A(f"v_cvt_pk_bf16_f32 v{o}, v{t0}, v{t0 + 1}")
            A(f"v_cvt_pk_bf16_f32 v{o + 1}, v{t0 + 2}, v{t0 + 3}")
            A(f"v_cvt_pk_bf16_f32 v{o + 2}, v{t1}, v{t1 + 1}")
            A(f"v_cvt_pk_bf16_f32 v{o + 3}, v{t1 + 2}, v{t1 + 3}")
            A(f"buffer_store_dwordx4 {vr(o, 4)}, v{6 + nt}, s[20:23], 0 offen offset:{grp * 64}")
    A("s_waitcnt vmcnt(0)") if STAMPS else None
    stamp(A, 11)
    stamp_dump(A, 12, 1, 12)
    A.label("L_k2_end")
    A("s_endpgm")
    return name, kd(name, FB + 96), (256, 256, NS * SS)


def unpack8(A, dst, src):
    for j in range(4):
        A(f"v_lshlrev_b32 v{dst + 2 * j}, 16, v{src + j}")
        A(f"v_and_b32 v{dst + 2 * j + 1}, 0xffff0000, v{src + j}")


def pack8(A, dst, src):
    for j in range(4):
        A(f"v_cvt_pk_bf16_f32 v{dst + j}, v{src + 2 * j}, v{src + 2 * j + 1}")


def gen_k3(A):
    name = "k3_ln_kernel"
    kernel_header(A, name)
    A("""
    s_cmp_ge_u32 s2, 512
    s_cbranch_scc1 L_k3_end
    s_load_dwordx2 s[4:5], s[0:1], 0
    s_load_dwordx2 s[6:7], s[0:1], 48
    s_load_dwordx2 s[8:9], s[0:1], 80
    s_load_dwordx2 s[12:13], s[0:1], 96
    v_and_b32 v1, 63, v0
    v_lshrrev_b32 v2, 6, v0
    s_lshl_b32 s3, s2, 2
    v_add_u32 v2, s3, v2
    v_lshlrev_b32 v3, 4, v1
    v_lshl_add_u32 v4, v2, 10, v3
    s_waitcnt lgkmcnt(0)
    """)
    srd(A, 16, 4, 2 << 20)
    srd(A, 20, 6, 1024)
    srd(A, 24, 8, 2 << 20)
    srd_off(A, 28, 12, WS_P, 7 << 20)
    A("""
    s_mov_b32 s32, 0x200000
    s_mov_b32 s33, 0x400000
    buffer_load_dwordx4 v[8:11], v4, s[28:31], 0 offen
    buffer_load_dwordx4 v[12:15], v4, s[28:31], s32 offen
    buffer_load_dwordx4 v[16:19], v4, s[16:19], 0 offen
    buffer_load_dwordx4 v[20:23], v3, s[20:23], 0 offen
    s_waitcnt vmcnt(2)
    """)
    unpack8(A, 24, 8)
    unpack8(A, 32, 12)
    for j in range(8):
        A(f"v_sub_f32 v{24 + j}, v{24 + j}, v{32 + j}")
    pack8(A, 8, 24)
    unpack8(A, 24, 8)
    A("s_waitcnt vmcnt(1)")
    unpack8(A, 32, 16)
    for j in range(8):
        A(f"v_add_f32 v{24 + j}, v{24 + j}, v{32 + j}")
    pack8(A, 8, 24)
    unpack8(A, 24, 8)
    A("""
    v_add_f32 v5, v24, v25
    v_add_f32 v6, v26, v27
    v_add_f32 v5, v5, v28
    v_add_f32 v6, v6, v29
    v_add_f32 v5, v5, v30
    v_add_f32 v6, v6, v31
    v_add_f32 v5, v5, v6
    """)
    wave_sum(A, 5, 6)
    A("v_mul_f32 v5, 0x3b000000, v5")
    for j in range(8):
        A(f"v_sub_f32 v{32 + j}, v{24 + j}, v5")
    A("v_mul_f32 v6, v32, v32")
    for j in range(1, 8):
        A(f"v_fmac_f32 v6, v{32 + j}, v{32 + j}")
    wave_sum(A, 6, 7)
    A("v_mul_f32 v6, 0x3b000000, v6")
    bf16_round(A, 6)
    A("v_add_f32 v6, 0x3727c5ac, v6")
    bf16_round(A, 6)
    A("v_sqrt_f32 v6, v6")
    A("s_nop 0")
    bf16_round(A, 6)
    A("v_rcp_f32 v6, v6")
    bf16_round(A, 5)
    for j in range(8):
        A(f"v_sub_f32 v{32 + j}, v{24 + j}, v5")
    pack8(A, 12, 32)
    unpack8(A, 32, 12)
    for j in range(8):
        A(f"v_mul_f32 v{32 + j}, v{32 + j}, v6")
    pack8(A, 12, 32)
    unpack8(A, 32, 12)
    A("buffer_store_dwordx4 v[12:15], v4, s[28:31], s33 offen")
    for j in range(8):
        A(f"v_add_f32 v{40 + j}, v{24 + j}, v{32 + j}")
    pack8(A, 16, 40)
    A("buffer_store_dwordx4 v[16:19], v4, s[24:27], 0 offen")
    A("s_waitcnt vmcnt(2)")
    unpack8(A, 40, 20)
    A("v_mul_f32 v7, v32, v40")
    for j in range(1, 8):
        A(f"v_fmac_f32 v7, v{32 + j}, v{40 + j}")
    wave_sum(A, 7, 6)
    A("""
    v_cvt_pk_bf16_f32 v7, v7, v7
    v_and_b32 v7, 0xffff, v7
    v_xor_b32 v5, 0xffff, v7
    v_or_b32 v6, 0x8000, v7
    v_cmp_lt_u32 vcc, 0x7fff, v7
    s_nop 1
    v_cndmask_b32 v7, v6, v5, vcc
    v_lshlrev_b32 v7, 16, v7
    v_sub_u32 v5, 0x7ff, v2
    v_or_b32 v7, v7, v5
    v_lshlrev_b32 v5, 2, v2
    v_add_u32 v5, 0x600000, v5
    v_cmp_eq_u32 vcc, 0, v1
    s_and_saveexec_b64 s[34:35], vcc
    buffer_store_dword v7, v5, s[28:31], 0 offen
    """)
    A.label("L_k3_end")
    A("s_endpgm")
    return name, kd(name, 48), (512, 256, 0)


def topk_rounds(A, keys, tmp, out_s, nrows, sW):
    w1 = sW[0]
    A(f"s_mov_b32 s{w1}, -1")
    for rnd, so in enumerate(out_s):
        for k, t in zip(keys, tmp):
            A(f"v_sub_u32 v{t}, s{w1}, v{k}")
        ts = list(tmp)
        m = ts[0]
        rest = ts[1:]
        while rest:
            if len(rest) >= 2:
                A(f"v_min3_u32 v{m}, v{m}, v{rest[0]}, v{rest[1]}")
                rest = rest[2:]
            else:
                A(f"v_min_u32 v{m}, v{m}, v{rest[0]}")
                rest = rest[1:]
        row_reduce(A, "v_min_u32", m)
        A("s_nop 0")
        for r in range(nrows):
            A(f"v_readlane_b32 s{sW[1 + r]}, v{m}, {16 * r}")
        A("s_nop 0")
        for r in range(1, nrows):
            A(f"s_min_u32 s{sW[1]}, s{sW[1]}, s{sW[1 + r]}")
        A(f"s_sub_u32 s{so}, s{w1}, s{sW[1]}")
        A(f"s_sub_u32 s{w1}, s{so}, 1")
        A("s_nop 0")


def gen_k4(A):
    name = "k4_up_kernel"
    kernel_header(A, name)
    A("""
    s_cmp_ge_u32 s2, 112
    s_cbranch_scc1 L_k4_end
    s_load_dwordx4 s[4:7], s[0:1], 56
    s_load_dwordx2 s[12:13], s[0:1], 96
    v_and_b32 v1, 63, v0
    v_lshrrev_b32 v2, 6, v0
    s_nop 0
    v_readfirstlane_b32 s33, v2
    v_lshrrev_b32 v3, 1, v1
    s_lshl_b32 s34, s33, 7
    v_add_u32 v3, s34, v3
    s_movk_i32 s35, 3584
    v_mul_lo_u32 v3, v3, s35
    v_and_b32 v4, 1, v1
    v_lshl_add_u32 v3, v4, 4, v3
    s_lshl_b32 s35, s2, 5
    v_add_u32 v3, s35, v3
    v_lshlrev_b32 v4, 5, v0
    s_waitcnt lgkmcnt(0)
    """)
    srd(A, 16, 4, 512 * 1792 * 2)
    srd(A, 20, 6, 512 * 1792 * 2)
    srd_off(A, 24, 12, WS_HN, 3 << 20)
    A("s_mov_b32 s36, 0x200000")
    A("buffer_load_dwordx4 v[16:19], v4, s[24:27], s36 offen")
    A("buffer_load_dwordx4 v[20:23], v4, s[24:27], s36 offen offset:16")
    A("s_lshl_b32 s37, s33, 12")
    for mat in range(2):
        for i in range(4):
            A(f"s_add_u32 s38, s37, {mat * 16384 + i * 1024}")
            A("s_mov_b32 m0, s38")
            A(f"s_mov_b32 s39, {i * 32 * 3584}")
            A(f"buffer_load_dwordx4 v3, {sr(16 + mat * 4, 4)}, s39 offen lds")
    A("s_waitcnt vmcnt(8)")
    topk_rounds(A, list(range(16, 24)), list(range(24, 32)), list(range(48, 56)), 4, [56, 57, 58, 59, 60])
    A("v_mov_b32 v5, 0")
    for c in range(8):
        A(f"v_writelane_b32 v5, s{48 + c}, {c}")
    A("""
    s_lshl_b32 s38, s33, 5
    s_add_u32 s38, s38, 32768
    v_lshlrev_b32 v6, 2, v1
    v_add_u32 v7, s38, v6
    s_mov_b64 exec, 0xff
    ds_write_b32 v7, v5
    s_mov_b64 exec, -1
    s_waitcnt lgkmcnt(0)
    s_barrier
    v_and_b32 v7, 31, v1
    v_lshlrev_b32 v7, 2, v7
    ds_read_b32 v16, v7 offset:32768
    s_waitcnt lgkmcnt(0)
    """)
    topk_rounds(A, [16], [24], list(range(48, 56)), 2, [56, 57, 58, 59, 60])
    A("v_mov_b32 v5, 0")
    for c in range(8):
        A(f"v_writelane_b32 v5, s{48 + c}, {c}")
    A(f"""
    s_or_b32 s38, s2, s33
    s_cmp_lg_u32 s38, 0
    s_cbranch_scc1 L_k4_nosel
    v_add_u32 v9, {WS_SEL - WS_HN}, v6
    s_mov_b64 exec, 0xff
    buffer_store_dword v5, v9, s[24:27], 0 offen
    s_mov_b64 exec, -1
    """)
    A.label("L_k4_nosel")
    XS = 37120
    A(f"""
    s_lshl_b32 s38, s33, 1
    s_add_u32 s39, s38, 1
    v_readlane_b32 s60, v5, s38
    v_readlane_b32 s61, v5, s39
    s_mul_i32 s62, s38, 1040
    s_add_u32 s62, s62, {XS}
    v_lshlrev_b32 v9, 4, v1
    s_and_b32 s60, s60, 0x7ff
    s_sub_u32 s60, 0x7ff, s60
    s_lshl_b32 s60, s60, 10
    s_and_b32 s61, s61, 0x7ff
    s_sub_u32 s61, 0x7ff, s61
    s_lshl_b32 s61, s61, 10
    s_mov_b32 m0, s62
    s_add_u32 s62, s62, 1040
    buffer_load_dwordx4 v9, s[24:27], s60 offen lds
    s_mov_b32 m0, s62
    s_nop 0
    buffer_load_dwordx4 v9, s[24:27], s61 offen lds
    v_and_b32 v8, 7, v1
    s_movk_i32 s38, 1040
    v_mul_lo_u32 v8, v8, s38
    v_lshrrev_b32 v9, 4, v1
    v_lshl_add_u32 v8, v9, 3, v8
    s_lshl_b32 s38, s33, 8
    s_add_u32 s38, s38, {XS}
    v_add_u32 v8, s38, v8
    v_lshlrev_b32 v10, 3, v1
    v_add_u32 v10, s37, v10
    s_waitcnt vmcnt(0)
    s_barrier
    """)
    AF = 32
    for c in range(4):
        A(f"ds_read_b64 {vr(AF + c * 4, 2)}, v8 offset:{c * 64}")
        A(f"ds_read_b64 {vr(AF + c * 4 + 2, 2)}, v8 offset:{c * 64 + 32}")
    BF = 48
    for mat in range(2):
        for c in range(4):
            b = BF + (mat * 4 + c) * 4
            A(f"ds_read_b64_tr_b16 {vr(b, 2)}, v10 offset:{mat * 16384 + c * 1024}")
            A(f"ds_read_b64_tr_b16 {vr(b + 2, 2)}, v10 offset:{mat * 16384 + c * 1024 + 512}")
    A("s_waitcnt lgkmcnt(0)")
    for c in range(4):
        for mat in range(2):
            acc = vr(80 + mat * 4, 4)
            cc = "0" if c == 0 else acc
            A(f"v_mfma_f32_16x16x32_bf16 {acc}, {vr(AF + c * 4, 4)}, {vr(BF + (mat * 4 + c) * 4, 4)}, {cc}")
    A("""
    s_lshl_b32 s38, s33, 10
    s_add_u32 s38, s38, 33024
    v_lshlrev_b32 v11, 4, v1
    v_add_u32 v12, s38, v11
    s_nop 7
    s_mov_b64 exec, 0xffffffff
    ds_write_b128 v12, v[80:83]
    ds_write_b128 v12, v[84:87] offset:512
    s_mov_b64 exec, -1
    s_waitcnt lgkmcnt(0)
    s_barrier
    s_cmp_lg_u32 s33, 0
    s_cbranch_scc1 L_k4_end
    s_mov_b64 exec, 0xffffffff
    """)
    for w in range(4):
        for mat in range(2):
            A(f"ds_read_b128 {vr(48 + (w * 2 + mat) * 4, 4)}, v11 offset:{33024 + w * 1024 + mat * 512}")
    A("s_waitcnt lgkmcnt(0)")
    for mat in range(2):
        for r in range(4):
            d = 48 + mat * 4 + r
            A(f"v_add_f32 v{d}, v{d}, v{d + 8}")
            A(f"v_add_f32 v{d + 16}, v{d + 16}, v{d + 24}")
            A(f"v_add_f32 v{d}, v{d}, v{d + 16}")
            bf16_round(A, d)
    for r in range(4):
        g = 48 + r
        u = 52 + r
        t = 56 + r
        A(f"v_mul_f32 v{t}, 0xbfb8aa3b, v{g}")
        A(f"v_exp_f32 v{t}, v{t}")
        A("s_nop 0")
        A(f"v_add_f32 v{t}, 1.0, v{t}")
        A(f"v_rcp_f32 v{t}, v{t}")
        A("s_nop 0")
        A(f"v_mul_f32 v{g}, v{g}, v{t}")
        bf16_round(A, g)
        A(f"v_mul_f32 v{g}, v{g}, v{u}")
        A(f"v_cvt_pk_bf16_f32 v{g}, v{g}, v{g}")
    A(f"""
    v_lshrrev_b32 v9, 4, v1
    s_movk_i32 s38, 3584*4
    v_mul_lo_u32 v9, v9, s38
    v_and_b32 v10, 15, v1
    v_lshl_add_u32 v9, v10, 1, v9
    s_lshl_b32 s38, s2, 5
    s_add_u32 s38, s38, {WS_ACT - WS_HN}
    v_add_u32 v9, s38, v9
    """)
    for r in range(4):
        A(f"s_mov_b32 s39, {r * 3584}")
        A(f"buffer_store_short v{48 + r}, v9, s[24:27], s39 offen")
    A.label("L_k4_end")
    A("s_endpgm")
    return name, kd(name, 96), (112, 256, 37120 + 8 * 1040)


def gen_k5(A):
    name = "k5_down_kernel"
    kernel_header(A, name)
    A("""
    s_cmp_ge_u32 s2, 32
    s_cbranch_scc1 L_k5_end
    s_load_dwordx2 s[4:5], s[0:1], 0
    s_load_dwordx4 s[8:11], s[0:1], 72
    s_load_dwordx2 s[12:13], s[0:1], 96
    v_and_b32 v1, 63, v0
    v_lshrrev_b32 v2, 6, v0
    s_nop 0
    v_readfirstlane_b32 s33, v2
    s_mul_i32 s34, s33, 448
    v_lshrrev_b32 v3, 1, v1
    v_add_u32 v3, s34, v3
    v_lshlrev_b32 v3, 10, v3
    v_and_b32 v4, 1, v1
    v_lshl_add_u32 v3, v4, 4, v3
    s_lshl_b32 s35, s2, 5
    v_add_u32 v3, s35, v3
    s_waitcnt lgkmcnt(0)
    """)
    srd(A, 16, 8, 1792 * 512 * 2)
    srd(A, 20, 10, 2 << 20)
    srd(A, 24, 4, 2 << 20)
    srd_off(A, 28, 12, WS_P, 7 << 20)
    A(f"""
    v_lshrrev_b32 v9, 4, v1
    v_and_b32 v9, 1, v9
    v_lshlrev_b32 v9, 4, v9
    v_add_u32 v9, {WS_SEL - WS_P}, v9
    buffer_load_dwordx4 v[12:15], v9, s[28:31], 0 offen
    s_mul_i32 s37, s33, 14*1024
    """)
    for i in range(14):
        A(f"s_add_u32 s38, s37, {i * 1024}")
        A("s_mov_b32 m0, s38")
        A(f"s_mov_b32 s39, {i * 32 * 1024}")
        A("buffer_load_dwordx4 v3, s[16:19], s39 offen lds")
    ACTL = 59392
    A(f"""
    v_lshlrev_b32 v5, 4, v1
    s_lshl_b32 s38, s34, 1
    s_add_u32 s38, s38, {WS_ACT - WS_P}
    v_add_u32 v5, s38, v5
    s_mul_i32 s42, s33, 8*1040
    s_add_u32 s42, s42, {ACTL}
    """)
    for c in range(8):
        A(f"s_add_u32 s38, s42, {c * 1040}")
        A("s_mov_b32 m0, s38")
        A(f"s_mov_b32 s39, {c * 3584}")
        A("buffer_load_dwordx4 v5, s[28:31], s39 offen lds")
    AF = 32
    G = 144
    A("""
    s_cmp_lg_u32 s33, 0
    s_cbranch_scc1 L_k5_nog
    s_waitcnt vmcnt(22)
    v_and_b32 v10, 15, v1
    v_lshlrev_b32 v10, 1, v10
    v_add_u32 v10, s35, v10
    s_mov_b32 s40, 0x200000
    s_mov_b32 s41, 0x400000
    """)
    for r in range(4):
        A(f"v_and_b32 v{16 + r}, 0x7ff, v{12 + r}")
        A(f"v_sub_u32 v{16 + r}, 0x7ff, v{16 + r}")
        A(f"v_lshl_add_u32 v{16 + r}, v{16 + r}, 10, v10")
    A("s_mov_b64 exec, 0xffffffff")
    for r in range(4):
        A(f"buffer_load_ushort v{G + r}, v{16 + r}, s[28:31], 0 offen")
        A(f"buffer_load_ushort v{G + 4 + r}, v{16 + r}, s[28:31], s40 offen")
        A(f"buffer_load_ushort v{G + 8 + r}, v{16 + r}, s[28:31], s41 offen")
        A(f"buffer_load_ushort v{G + 12 + r}, v{16 + r}, s[24:27], 0 offen")
    A("""
    s_mov_b64 exec, -1
    s_waitcnt vmcnt(16)
    s_branch L_k5_g2
    """)
    A.label("L_k5_nog")
    A("s_waitcnt vmcnt(0)")
    A.label("L_k5_g2")
    A("""
    v_lshlrev_b32 v7, 3, v1
    v_add_u32 v7, s37, v7
    v_and_b32 v5, 7, v1
    s_movk_i32 s38, 1040
    v_mul_lo_u32 v5, v5, s38
    v_lshrrev_b32 v6, 4, v1
    v_lshl_add_u32 v5, v6, 3, v5
    v_add_u32 v5, s42, v5
    """)
    for c in range(14):
        A(f"ds_read_b64 {vr(AF + c * 4, 2)}, v5 offset:{c * 64}")
        A(f"ds_read_b64 {vr(AF + c * 4 + 2, 2)}, v5 offset:{c * 64 + 32}")
    BF = 88
    for c in range(14):
        b = BF + c * 4
        A(f"ds_read_b64_tr_b16 {vr(b, 2)}, v7 offset:{c * 1024}")
        A(f"ds_read_b64_tr_b16 {vr(b + 2, 2)}, v7 offset:{c * 1024 + 512}")
    A("s_waitcnt lgkmcnt(0)")
    for c in range(14):
        acc = vr(20 + (c & 1) * 4, 4)
        cc = "0" if c < 2 else acc
        A(f"v_mfma_f32_16x16x32_bf16 {acc}, {vr(AF + c * 4, 4)}, {vr(BF + c * 4, 4)}, {cc}")
    RED = 57344
    A(f"""
    s_lshl_b32 s38, s33, 9
    s_add_u32 s38, s38, {RED}
    v_lshlrev_b32 v11, 4, v1
    v_add_u32 v8, s38, v11
    s_nop 7
    """)
    for r in range(4):
        A(f"v_add_f32 v{20 + r}, v{20 + r}, v{24 + r}")
    A("""
    s_mov_b64 exec, 0xffffffff
    ds_write_b128 v8, v[20:23]
    s_mov_b64 exec, -1
    s_waitcnt lgkmcnt(0)
    s_barrier
    s_cmp_lg_u32 s33, 0
    s_cbranch_scc1 L_k5_end
    s_mov_b64 exec, 0xffffffff
    """)
    for w in range(4):
        A(f"ds_read_b128 {vr(32 + w * 4, 4)}, v11 offset:{RED + w * 512}")
    A("s_waitcnt vmcnt(0) lgkmcnt(0)")
    for r in range(4):
        d = 32 + r
        A(f"v_add_f32 v{d}, v{d}, v{d + 4}")
        A(f"v_add_f32 v{d + 8}, v{d + 8}, v{d + 12}")
        A(f"v_add_f32 v{d}, v{d}, v{d + 8}")
        bf16_round(A, d)
        k = 12 + r
        t = 48
        A(f"v_lshrrev_b32 v{t}, 16, v{k}")
        A(f"v_and_b32 v{t + 1}, 0x7fff, v{t}")
        A(f"v_xor_b32 v{t + 2}, 0xffff, v{t}")
        A(f"v_cmp_lt_u32 vcc, 0x7fff, v{t}")
        A("s_nop 1")
        A(f"v_cndmask_b32 v{t}, v{t + 2}, v{t + 1}, vcc")
        A(f"v_lshlrev_b32 v{t}, 16, v{t}")
        A(f"v_mul_f32 v{t}, 0xbfb8aa3b, v{t}")
        A(f"v_exp_f32 v{t}, v{t}")
        A("s_nop 0")
        A(f"v_add_f32 v{t}, 1.0, v{t}")
        A(f"v_rcp_f32 v{t}, v{t}")
        A("s_nop 0")
        bf16_round(A, t)
        A(f"v_mul_f32 v{d}, v{d}, v{t}")
        bf16_round(A, d)
        p, q, hn, x = G + r, G + 4 + r, G + 8 + r, G + 12 + r
        for z in (p, q, hn, x):
            A(f"v_lshlrev_b32 v{z}, 16, v{z}")
        A(f"v_sub_f32 v{p}, v{p}, v{q}")
        bf16_round(A, p)
        A(f"v_add_f32 v{p}, v{p}, v{x}")
        bf16_round(A, p)
        A(f"v_add_f32 v{hn}, v{hn}, v{d}")
        bf16_round(A, hn)
        A(f"v_add_f32 v{p}, v{p}, v{hn}")
        A(f"v_cvt_pk_bf16_f32 v{p}, v{p}, v{p}")
        A(f"buffer_store_short v{p}, v{16 + r}, s[20:23], 0 offen")
    A.label("L_k5_end")
    A("s_endpgm")
    return name, kd(name, 160), (32, 256, 59392 + 32 * 1040)


HEADER = """; Generated by dev/gen.py -- 5-launch list:
"""


def main():
    global STAMPS
    if len(sys.argv) > 2 and sys.argv[2] == "stamps":
        STAMPS = True
    A = Asm()
    gens = [gen_k1, gen_k2, gen_k3, gen_k4, gen_k5]
    kds = []
    launches = []
    for g in gens:
        name, kdtext, (grid, block, lds) = g(A)
        kds.append(kdtext)
        launches.append(f"; @launch kernel={name} grid=({grid},1,1) block=({block},1,1) lds={lds}")
    out = HEADER + "\n".join(launches) + "\n"
    out += '.amdgcn_target "amdgcn-amd-amdhsa--gfx950"\n.text\n'
    out += A.text()
    out += '.section .rodata,"a"\n' + "".join(kds)
    path = sys.argv[1] if len(sys.argv) > 1 else f"cdna_kernels/{NAME}.s"
    open(path, "w").write(out)


if __name__ == "__main__":
    main()
```

```python
import sys

NAME = "sequential_preLN__spectral_fnet__moe_arch_mod__prompt"

WS_BF = 0
WS_P = 4 << 20
WS_Q = 6 << 20
WS_HN = 8 << 20
WS_KEYS = 10 << 20
WS_ACT = (10 << 20) + 65536
WS_SEL = (10 << 20) + 131072
WS_REC = (10 << 20) + 262144
WS_FLAG = WS_REC + 16384
WS_FLAGA = WS_REC + 17408
WS_TOTAL = 11 << 20


class Asm:
    def __init__(self):
        self.lines = []

    def __call__(self, s):
        for ln in s.strip("\n").split("\n"):
            ln = ln.strip()
            if ln:
                self.lines.append("    " + ln)

    def label(self, s):
        self.lines.append(s + ":")

    def raw(self, s):
        self.lines.append(s)

    def text(self):
        return "\n".join(self.lines) + "\n"


def vr(a, n):
    return f"v[{a}:{a + n - 1}]"


def sr(a, n):
    return f"s[{a}:{a + n - 1}]"


def srd(A, d, base, nbytes):
    A(f"s_mov_b32 s{d}, s{base}")
    A(f"s_and_b32 s{d + 1}, s{base + 1}, 0xffff")
    A(f"s_mov_b32 s{d + 2}, {nbytes:#x}")
    A(f"s_mov_b32 s{d + 3}, 0x00020000")


def srd_off(A, d, base, off, nbytes):
    A(f"s_add_u32 s{d}, s{base}, {off:#x}")
    A(f"s_addc_u32 s{d + 1}, s{base + 1}, 0")
    A(f"s_and_b32 s{d + 1}, s{d + 1}, 0xffff")
    A(f"s_mov_b32 s{d + 2}, {nbytes:#x}")
    A(f"s_mov_b32 s{d + 3}, 0x00020000")


DPP = "row_mask:0xf bank_mask:0xf"


def row_reduce(A, op, v):
    A("s_nop 1")
    A(f"{op}_dpp v{v}, v{v}, v{v} quad_perm:[1,0,3,2] {DPP}")
    A("s_nop 1")
    A(f"{op}_dpp v{v}, v{v}, v{v} quad_perm:[2,3,0,1] {DPP}")
    A("s_nop 1")
    A(f"{op}_dpp v{v}, v{v}, v{v} row_half_mirror {DPP}")
    A("s_nop 1")
    A(f"{op}_dpp v{v}, v{v}, v{v} row_mirror {DPP}")


def cross_rows_sum(A, v, tmp):
    A(f"v_mov_b32 v{tmp}, v{v}")
    A("s_nop 1")
    A(f"v_permlane16_swap_b32 v{v}, v{tmp}")
    A("s_nop 1")
    A(f"v_add_f32 v{v}, v{v}, v{tmp}")
    A(f"v_mov_b32 v{tmp}, v{v}")
    A("s_nop 1")
    A(f"v_permlane32_swap_b32 v{v}, v{tmp}")
    A("s_nop 1")
    A(f"v_add_f32 v{v}, v{v}, v{tmp}")


def wave_sum(A, v, tmp):
    row_reduce(A, "v_add_f32", v)
    cross_rows_sum(A, v, tmp)


def bf16_round(A, v):
    A(f"v_cvt_pk_bf16_f32 v{v}, v{v}, v{v}")
    A(f"v_lshlrev_b32 v{v}, 16, v{v}")


STAMPS = False
SLEEP0 = 80
SLEEP1 = 30
PF_SCHED = [2, 2, 3, 3, 4, 4, 5, 5]
WS_STAMP = 12 << 20


def stamp(A, i):
    if STAMPS:
        A(f"s_memtime s[90:91]")
        A("s_waitcnt lgkmcnt(0)")
        A(f"s_mov_b32 s{76 + i}, s90")


def stamp_dump(A, n, kidx, ws_lo):
    if STAMPS:
        A("s_mov_b64 exec, -1")
        A("v_mov_b32 v1, 0")
        for i in range(n):
            A(f"s_sub_u32 s91, s{76 + i}, s76")
            A(f"v_writelane_b32 v1, s91, {i}")
        A(f"s_add_u32 s92, s{ws_lo}, {WS_STAMP + kidx * (1 << 20):#x}")
        A(f"s_addc_u32 s93, s{ws_lo + 1}, 0")
        A("s_and_b32 s93, s93, 0xffff")
        A("s_mov_b32 s94, 0x100000")
        A("s_mov_b32 s95, 0x00020000")
        A("v_lshlrev_b32 v2, 2, v0")
        A("s_lshl_b32 s91, s2, 12")
        A("v_add_u32 v2, s91, v2")
        A("buffer_store_dword v1, v2, s[92:95], 0 offen")


def kernel_header(A, name):
    A.raw(f".globl {name}")
    A.raw(".p2align 8")
    A.raw(f".type {name},@function")
    A.label(name)


def kd(name, vgpr, sgpr=96):
    acc = (vgpr + 3) // 4 * 4
    return f""".p2align 6
.amdhsa_kernel {name}
  .amdhsa_next_free_vgpr {vgpr}
  .amdhsa_next_free_sgpr {sgpr}
  .amdhsa_accum_offset {acc}
  .amdhsa_group_segment_fixed_size 0
  .amdhsa_kernarg_size 104
  .amdhsa_user_sgpr_count 2
  .amdhsa_user_sgpr_kernarg_segment_ptr 1
  .amdhsa_system_sgpr_workgroup_id_x 1
  .amdhsa_float_denorm_mode_32 3
.end_amdhsa_kernel
"""


def gen_k1(A):
    name = "k1_lngemm_kernel"
    kernel_header(A, name)
    A("""
    s_cmp_ge_u32 s2, 256
    s_cbranch_scc1 L_k1_end
    """)
    stamp(A, 0)
    A("""
    s_load_dwordx2 s[4:5], s[0:1], 0
    s_load_dwordx8 s[44:51], s[0:1], 8
    s_load_dwordx2 s[12:13], s[0:1], 96
    s_and_b32 s27, s2, 7
    s_lshr_b32 s26, s2, 3
    s_lshr_b32 s30, s26, 3
    s_lshl_b32 s28, s27, 2
    s_add_u32 s28, s28, s30
    s_and_b32 s29, s26, 7
    v_and_b32 v1, 63, v0
    v_lshrrev_b32 v2, 6, v0
    s_nop 0
    v_readfirstlane_b32 s30, v2
    s_and_b32 s32, s30, 1
    s_lshr_b32 s31, s30, 1
    """)
    WL = 32768
    A("""
    v_and_b32 v8, 15, v1
    v_lshrrev_b32 v9, 4, v1
    v_lshlrev_b32 v10, 4, v1
    """)
    A("""
    s_lshl_b32 s33, s28, 6
    s_lshl_b32 s34, s30, 3
    s_add_u32 s33, s33, s34
    v_add_u32 v2, s33, v9
    v_lshlrev_b32 v2, 10, v2
    v_lshl_add_u32 v2, v8, 4, v2
    """)
    A("""
    s_lshl_b32 s33, s32, 7
    v_xor_b32 v4, s33, v10
    s_and_b32 s33, s29, 3
    s_lshl_b32 s33, s33, 7
    s_lshl_b32 s34, s30, 4
    s_add_u32 s33, s33, s34
    s_lshl_b32 s33, s33, 10
    s_lshl_b32 s34, s30, 14
    """)
    A(f"s_add_u32 s34, s34, {WL}")
    A("""
    s_lshr_b32 s35, s27, 1
    s_lshl_b32 s35, s35, 21
    s_lshl_b32 s36, s26, 16
    s_add_u32 s35, s35, s36
    s_lshl_b32 s36, s30, 13
    s_add_u32 s35, s35, s36
    v_lshlrev_b32 v5, 7, v1
    v_add_u32 v5, s35, v5
    """)
    A("""
    s_and_b32 s37, s29, 3
    s_lshl_b32 s37, s37, 1
    s_lshr_b32 s38, s30, 2
    s_add_u32 s37, s37, s38
    s_lshr_b32 s36, s29, 2
    s_lshl_b32 s35, s36, 21
    s_lshl_b32 s37, s37, 18
    s_add_u32 s35, s35, s37
    s_lshl_b32 s37, s28, 13
    s_add_u32 s35, s35, s37
    s_and_b32 s37, s31, 1
    s_lshl_b32 s37, s37, 12
    s_add_u32 s35, s35, s37
    s_lshl_b32 s37, s32, 10
    s_add_u32 s35, s35, s37
    v_add_u32 v3, s35, v10
    s_waitcnt lgkmcnt(0)
    """)
    srd(A, 16, 4, 2048 * 512 * 2)
    A("""
    s_cmp_eq_u32 s36, 0
    s_cselect_b32 s20, s48, s50
    s_cselect_b32 s21, s49, s51
    s_and_b32 s21, s21, 0xffff
    s_mov_b32 s22, 0x80000
    s_mov_b32 s23, 0x00020000
    s_and_b32 s37, s27, 1
    s_cmp_eq_u32 s37, 0
    s_cselect_b32 s52, s44, s46
    s_cselect_b32 s53, s45, s47
    s_and_b32 s53, s53, 0xffff
    s_mov_b32 s54, 0x800000
    s_mov_b32 s55, 0x00020000
    """)
    srd_off(A, 56, 12, WS_BF, 4 << 20)
    XB = 64
    for g in range(2):
        A(f"s_mov_b32 s38, {g * 4096}")
        for j in range(4):
            A(f"buffer_load_dwordx4 {vr(XB + (g * 4 + j) * 4, 4)}, v2, s[16:19], s38 offen offset:{j * 256}")
    for r4 in range(4):
        A(f"s_add_u32 s40, s34, {r4 * 4096}")
        A("s_mov_b32 m0, s40")
        A(f"s_add_u32 s41, s33, {r4 * 4096}")
        for rr in range(4):
            r = r4 * 4 + rr
            f = ((r >> 3) * 4 + (r & 3)) * 16
            A(f"v_xor_b32 v{12 + rr}, {f:#x}, v4")
            A(f"buffer_load_dwordx4 v{12 + rr}, s[20:23], s41 offen offset:{rr * 1024} lds")
    pfn = [0]
    sched = PF_SCHED

    def pf(point):
        waves = [w for w in range(8) if sched[w] == point]
        if not waves:
            return
        n = pfn[0]
        pfn[0] += 1
        mask = sum(1 << w for w in waves)
        A(f"s_mov_b32 s42, {mask}")
        A("s_bitcmp0_b32 s42, s30")
        A(f"s_cbranch_scc1 L_k1_pf{n}")
        A("buffer_load_dword v6, v5, s[52:55], 0 offen")
        A.label(f"L_k1_pf{n}")

    pf(0)
    stamp(A, 1)
    A("""
    s_and_b32 s40, s30, 3
    s_lshl_b32 s40, s40, 2
    v_add_u32 v14, s40, v9
    v_xor_b32 v14, v14, v8
    v_lshlrev_b32 v14, 4, v14
    s_lshl_b32 s40, s30, 3
    v_add_u32 v15, s40, v9
    v_lshl_add_u32 v16, v15, 9, v14
    v_add_u32 v17, 2048, v16
    """)
    A(f"""
    v_lshrrev_b32 v14, 2, v8
    v_lshlrev_b32 v14, 3, v14
    v_and_b32 v15, 3, v8
    v_add_u32 v14, v14, v15
    s_lshl_b32 s40, s32, 5
    v_add_u32 v15, s40, v14
    v_lshlrev_b32 v15, 9, v15
    s_lshl_b32 s40, s31, 5
    v_add_u32 v14, s40, v14
    v_lshlrev_b32 v14, 10, v14
    v_add_u32 v14, {WL}, v14
    """)
    for k3 in range(4):
        A(f"v_add_u32 v18, {k3 * 4}, v9")
        A("v_xor_b32 v18, v18, v8")
        A(f"v_lshl_add_u32 v{20 + k3}, v18, 4, v15")
        A(f"v_lshl_add_u32 v{24 + k3}, v18, 4, v14")
    A("v_mov_b32 v19, 0x3f803f80")
    A("s_waitcnt vmcnt(16)")
    stamp(A, 2)
    pf(1)
    T = 96
    NG = 2
    for g in range(NG):
        sm = 28 + g
        A(f"v_mov_b32 v{sm}, 0")
        for r in range(16):
            A(f"v_dot2_f32_bf16 v{sm}, v{XB + g * 16 + r}, v19, v{sm}")
    A("s_nop 1")
    for g in range(NG):
        row_reduce(A, "v_add_f32", 28 + g)
    for g in range(NG):
        sm = 28 + g
        mb = 32 + g
        A(f"v_mul_f32 v{sm}, 0x3b000000, v{sm}")
        A(f"v_mov_b32 v{mb}, v{sm}")
        bf16_round(A, mb)
        A(f"v_sub_f32 v{sm}, v{sm}, v{mb}")
    for g in range(NG):
        q0 = T + 8 + g * 2
        A(f"v_mov_b32 v{q0}, 0")
        A(f"v_mov_b32 v{q0 + 1}, 0")
        for r in range(16):
            x = XB + g * 16 + r
            t = T + 16 + (r & 3) * 2
            A(f"v_lshlrev_b32 v{t}, 16, v{x}")
            A(f"v_and_b32 v{t + 1}, 0xffff0000, v{x}")
            A(f"v_sub_f32 v{t}, v{t}, v{32 + g}")
            A(f"v_sub_f32 v{t + 1}, v{t + 1}, v{32 + g}")
            A(f"v_fmac_f32 v{q0}, v{t}, v{t}")
            A(f"v_fmac_f32 v{q0 + 1}, v{t + 1}, v{t + 1}")
            A(f"v_cvt_pk_bf16_f32 v{x}, v{t}, v{t + 1}")
        A(f"v_add_f32 v{36 + g}, v{q0}, v{q0 + 1}")
    pf(2)
    for g in range(NG):
        row_reduce(A, "v_add_f32", 36 + g)
    for g in range(NG):
        vv = 36 + g
        A(f"v_mul_f32 v{vv}, 0x3b000000, v{vv}")
        A(f"v_fma_f32 v{vv}, -v{28 + g}, v{28 + g}, v{vv}")
        A(f"v_max_f32 v{vv}, 0, v{vv}")
        bf16_round(A, vv)
        A(f"v_add_f32 v{vv}, 0x3727c5ac, v{vv}")
        bf16_round(A, vv)
        A(f"v_sqrt_f32 v{vv}, v{vv}")
        A("s_nop 0")
        bf16_round(A, vv)
        A(f"v_rcp_f32 v{T + g}, v{vv}")
    A("s_nop 0")
    for g in range(NG):
        for r in range(16):
            x = XB + g * 16 + r
            t = T + 16 + (r & 3) * 2
            A(f"v_lshlrev_b32 v{t}, 16, v{x}")
            A(f"v_and_b32 v{t + 1}, 0xffff0000, v{x}")
            A(f"v_mul_f32 v{t}, v{t}, v{T + g}")
            A(f"v_mul_f32 v{t + 1}, v{t + 1}, v{T + g}")
            A(f"v_cvt_pk_bf16_f32 v{x}, v{t}, v{t + 1}")
            if (r & 3) == 3 and (r >> 2) < 2:
                j = r >> 2
                A(f"ds_write_b128 v{16 + g}, {vr(XB + (g * 4 + j) * 4, 4)} offset:{j * 256}")
    pf(3)
    stamp(A, 3)
    ACC = 32
    FB = 96

    def rd_list(kc):
        fb = FB + (kc & 1) * 16
        kcl = kc & 7
        out = []
        for h in range(2):
            out.append(f"ds_read_b128 {vr(fb + h * 4, 4)}, v{20 + (kcl & 3)} offset:{h * 2048 + (kcl >> 2) * 256}")
        for i in range(2):
            out.append(f"ds_read_b128 {vr(fb + 8 + i * 4, 4)}, v{24 + (kc & 3)} offset:{i * 4096 + (kc >> 2) * 256}")
        return out

    A("""
    s_waitcnt vmcnt(1) lgkmcnt(0)
    """)
    A(f"s_mov_b32 s42, {sum(1 << w for w in range(8) if sched[w] <= 3)}")
    A("""
    s_bitcmp1_b32 s42, s30
    s_cbranch_scc1 L_k1_w1
    s_waitcnt vmcnt(0)
    """)
    A.label("L_k1_w1")
    A("s_barrier")
    stamp(A, 4)
    pf(4)
    for half in range(2):
        if half == 1:
            pf(6)
            A("s_barrier")
            for g in range(NG):
                for j in (2, 3):
                    A(f"ds_write_b128 v{16 + g}, {vr(XB + (g * 4 + j) * 4, 4)} offset:{(j - 2) * 256}")
            A("s_waitcnt lgkmcnt(0)")
            A("s_barrier")
        for ins in rd_list(half * 8):
            A(ins)
        for kcl in range(8):
            kc = half * 8 + kcl
            fb = FB + (kc & 1) * 16
            nxt = rd_list(kc + 1) if kcl < 7 else []
            for ins in nxt:
                A(ins)
            if kcl == 4:
                pf(5 + 2 * half)
            A(f"s_waitcnt lgkmcnt({len(nxt)})")
            for h in range(2):
                for ii in range(2):
                    acc = vr(ACC + (h * 2 + ii) * 4, 4)
                    a = vr(fb + h * 4, 4)
                    b = vr(fb + 8 + ii * 4, 4)
                    cc = "0" if kc == 0 else acc
                    A(f"v_mfma_f32_16x16x32_bf16 {acc}, {a}, {b}, {cc}")
    A("s_nop 7")
    A("s_nop 1")
    stamp(A, 5)
    for i in range(2):
        o = FB + i * 4
        t0 = ACC + (0 * 2 + i) * 4
        t1 = ACC + (1 * 2 + i) * 4
        A(f"v_cvt_pk_bf16_f32 v{o}, v{t0}, v{t0 + 1}")
        A(f"v_cvt_pk_bf16_f32 v{o + 1}, v{t0 + 2}, v{t0 + 3}")
        A(f"v_cvt_pk_bf16_f32 v{o + 2}, v{t1}, v{t1 + 1}")
        A(f"v_cvt_pk_bf16_f32 v{o + 3}, v{t1 + 2}, v{t1 + 3}")
        A(f"buffer_store_dwordx4 {vr(o, 4)}, v3, s[56:59], 0 offen offset:{i * 2048}")
    A("s_waitcnt vmcnt(0)") if STAMPS else None
    stamp(A, 6)
    stamp_dump(A, 7, 0, 12)
    A.label("L_k1_end")
    A("s_endpgm")
    return name, kd(name, 128), (256, 512, 163840)


def gen_k2(A, NS=6):
    name = "k2_gemm_kernel"
    kernel_header(A, name)
    A("""
    s_cmp_ge_u32 s2, 256
    s_cbranch_scc1 L_k2_end
    """)
    stamp(A, 0)
    A("""
    s_load_dwordx4 s[4:7], s[0:1], 8
    s_load_dwordx2 s[12:13], s[0:1], 96
    s_load_dwordx4 s[44:47], s[0:1], 56
    s_load_dwordx2 s[48:49], s[0:1], 72
    s_and_b32 s28, s2, 7
    s_lshr_b32 s29, s2, 3
    s_and_b32 s30, s28, 1
    s_lshr_b32 s31, s28, 1
    s_lshl_b32 s31, s31, 2
    s_lshr_b32 s32, s29, 3
    s_add_u32 s31, s31, s32
    s_and_b32 s32, s29, 7
    v_and_b32 v1, 63, v0
    v_lshrrev_b32 v2, 6, v0
    s_nop 0
    v_readfirstlane_b32 s33, v2
    """)
    SS = 24576
    A("""
    v_and_b32 v12, 15, v1
    v_lshrrev_b32 v13, 4, v1
    v_and_b32 v14, 7, v1
    v_lshrrev_b32 v15, 3, v1
    s_lshl_b32 s34, s31, 7
    s_lshl_b32 s35, s33, 5
    s_add_u32 s34, s34, s35
    v_add_u32 v2, s34, v15
    v_lshlrev_b32 v2, 12, v2
    v_xor_b32 v3, v14, v15
    v_lshl_add_u32 v8, v3, 4, v2
    """)
    for j in range(1, 4):
        A(f"v_add_u32 v{8 + j}, {j * 32768 - j * 1024:#x}, v8")
    A("""
    v_lshlrev_b32 v5, 4, v1
    s_lshl_b32 s35, s33, 11
    v_add_u32 v4, s35, v5
    """)
    A("""
    v_add_u32 v2, s34, v12
    v_lshlrev_b32 v6, 10, v2
    v_lshl_add_u32 v6, v13, 4, v6
    s_lshl_b32 s36, s30, 21
    s_lshl_b32 s37, s32, 7
    s_add_u32 s36, s36, s37
    v_add_u32 v6, s36, v6
    v_add_u32 v7, 0x4000, v6
    """)
    NH = (NS + 1) // 2
    A("""
    s_lshl_b32 s36, s33, 12
    v_lshlrev_b32 v2, 7, v12
    v_add_u32 v2, s36, v2
    v_xor_b32 v3, v13, v14
    v_lshl_add_u32 v16, v3, 4, v2
    v_xor_b32 v17, 64, v16
    v_add_u32 v18, 0x4000, v5
    """)
    for h in range(1, NH):
        for k in range(3):
            A(f"v_add_u32 v{16 + h * 3 + k}, {h * 2 * SS:#x}, v{16 + k}")
    A("""
    s_waitcnt lgkmcnt(0)
    s_cmp_eq_u32 s30, 0
    s_cselect_b32 s8, s4, s6
    s_cselect_b32 s9, s5, s7
    s_and_b32 s9, s9, 0xffff
    s_mov_b32 s10, 0x800000
    s_mov_b32 s11, 0x00020000
    """)
    A("""
    s_lshl_b32 s37, s30, 21
    s_lshl_b32 s38, s32, 18
    s_add_u32 s37, s37, s38
    s_add_u32 s16, s12, s37
    s_addc_u32 s17, s13, 0
    s_and_b32 s17, s17, 0xffff
    s_mov_b32 s18, 0x40000
    s_mov_b32 s19, 0x00020000
    s_add_u32 s37, s35, 16384
    """)
    srd_off(A, 20, 12, WS_P, 7 << 20)
    A(f"""
    s_cmp_ge_u32 s2, 46
    s_cbranch_scc1 L_k2_nz
    s_cmp_lg_u32 s33, 0
    s_cbranch_scc1 L_k2_nz
    s_lshl_b32 s38, s2, 10
    s_add_u32 s39, s38, {WS_ACT - WS_P - 18 * 1024}
    s_add_u32 s38, s38, {WS_REC - WS_P}
    s_cmp_lt_u32 s2, 18
    s_cselect_b32 s38, s38, s39
    s_cselect_b32 s39, 0, -1
    v_mov_b32 v32, s39
    v_mov_b32 v33, s39
    v_mov_b32 v34, s39
    v_mov_b32 v35, s39
    buffer_store_dwordx4 v[32:35], v5, s[20:23], s38 offen
    s_waitcnt vmcnt(0)
    """)
    A.label("L_k2_nz")
    A("""
    s_lshl_b32 s50, s29, 2
    s_add_u32 s50, s50, s33
    s_cmp_lt_u32 s50, 40
    s_cselect_b32 s52, s44, s46
    s_cselect_b32 s53, s45, s47
    s_cselect_b32 s51, 0, 40
    s_cmp_lt_u32 s50, 80
    s_cselect_b32 s52, s52, s48
    s_cselect_b32 s53, s53, s49
    s_cselect_b32 s51, s51, 80
    s_and_b32 s53, s53, 0xffff
    s_mov_b32 s54, 0x1c0000
    s_mov_b32 s55, 0x00020000
    s_sub_u32 s51, s50, s51
    s_lshl_b32 s51, s51, 6
    v_add_u32 v30, s51, v1
    s_mov_b32 s51, 52429
    v_mul_lo_u32 v31, v30, s51
    v_lshrrev_b32 v31, 18, v31
    v_mul_u32_u24 v29, 5, v31
    v_sub_u32 v29, v30, v29
    s_movk_i32 s51, 3584
    v_mul_lo_u32 v31, v31, s51
    v_lshl_add_u32 v31, v29, 7, v31
    s_mul_i32 s51, s28, 448
    s_and_b32 s51, s51, 0xffffff80
    v_add_u32 v31, s51, v31
    v_lshlrev_b32 v30, 10, v30
    s_lshl_b32 s51, s28, 7
    v_add_u32 v30, s51, v30
    s_cmp_lt_u32 s50, 80
    s_cselect_b64 vcc, -1, 0
    s_nop 1
    v_cndmask_b32 v30, v30, v31, vcc
    """)
    ACC = 32
    FB = 64
    KS = 32

    def issue_groups(step):
        st = step % NS
        g = []
        g.append([f"s_add_u32 s40, s36, {st * SS}", "s_mov_b32 m0, s40", f"s_mov_b32 s39, {step * 128}",
                  "buffer_load_dwordx4 v8, s[8:11], s39 offen lds"])
        for j in range(1, 4):
            g.append([f"buffer_load_dwordx4 v{8 + j}, s[8:11], s39 offen offset:{j * 1024} lds"])
        g.append([f"s_add_u32 s40, s37, {st * SS}", "s_mov_b32 m0, s40", f"s_mov_b32 s38, {step * 8192}",
                  "buffer_load_dwordx4 v4, s[16:19], s38 offen lds"])
        g.append(["buffer_load_dwordx4 v4, s[16:19], s38 offen offset:1024 lds"])
        return g

    def issue(step):
        for g in issue_groups(step):
            for ins in g:
                A(ins)

    def rd_list(step):
        st = step % NS
        h = st >> 1
        so = (st & 1) * SS
        fb = FB + (step & 1) * 48
        out = []
        for ks in range(2):
            for mt in range(4):
                out.append(f"ds_read_b128 {vr(fb + (ks * 4 + mt) * 4, 4)}, v{18 + h * 3} offset:{so + mt * 2048 + ks * 1024}")
            for nt in range(2):
                out.append(f"ds_read_b128 {vr(fb + 32 + (ks * 2 + nt) * 4, 4)}, v{16 + h * 3 + ks} offset:{so + nt * 2048}")
        return out

    def rd(step):
        for ins in rd_list(step):
            A(ins)

    stamp(A, 1)
    for s_ in range(NS):
        issue(s_)
    stamp(A, 2)
    A(f"s_waitcnt vmcnt({6 * (NS - 1)})")
    A("s_barrier")
    stamp(A, 3)
    rd(0)
    A("s_waitcnt lgkmcnt(0)")
    for i in range(KS):
        fb = FB + (i & 1) * 48
        if i + 1 < KS:
            last = min(i + NS - 1, KS - 1)
            A(f"s_waitcnt vmcnt({6 * (last - (i + 1)) + (1 if i > KS - NS else 0)})")
            A("s_barrier")
            if i in (1, 2, 4, 8, 16, 24, 30):
                stamp(A, 4 + (1, 2, 4, 8, 16, 24, 30).index(i))
        if i == KS - NS:
            A("buffer_load_dword v29, v30, s[52:55], 0 offen")
        reads = rd_list(i + 1) if i + 1 < KS else []
        groups = issue_groups(i + NS) if (i + 1 < KS and i + NS < KS) else []
        pos = [1, 3, 6, 8, 11, 13]
        n = 0
        for ks in range(2):
            for mt in range(4):
                for nt in range(2):
                    acc = vr(ACC + (mt * 2 + nt) * 4, 4)
                    a = vr(fb + (ks * 4 + mt) * 4, 4)
                    b = vr(fb + 32 + (ks * 2 + nt) * 4, 4)
                    cc = "0" if (i == 0 and ks == 0) else acc
                    A(f"v_mfma_f32_16x16x32_bf16 {acc}, {a}, {b}, {cc}")
                    if n < len(reads):
                        A(reads[n])
                    if groups and n in pos:
                        for ins in groups[pos.index(n)]:
                            A(ins)
                    n += 1
        if i + 1 < KS:
            A("s_waitcnt lgkmcnt(0)")
    A("s_nop 7")
    A("s_nop 1")
    for nt in range(2):
        for grp in range(2):
            o = FB + (nt * 2 + grp) * 4
            t0 = ACC + ((2 * grp) * 2 + nt) * 4
            t1 = ACC + ((2 * grp + 1) * 2 + nt) * 4
            A(f"v_cvt_pk_bf16_f32 v{o}, v{t0}, v{t0 + 1}")
            A(f"v_cvt_pk_bf16_f32 v{o + 1}, v{t0 + 2}, v{t0 + 3}")
            A(f"v_cvt_pk_bf16_f32 v{o + 2}, v{t1}, v{t1 + 1}")
            A(f"v_cvt_pk_bf16_f32 v{o + 3}, v{t1 + 2}, v{t1 + 3}")
            A(f"buffer_store_dwordx4 {vr(o, 4)}, v{6 + nt}, s[20:23], 0 offen offset:{grp * 64}")
    A("s_waitcnt vmcnt(0)") if STAMPS else None
    stamp(A, 11)
    stamp_dump(A, 12, 1, 12)
    A.label("L_k2_end")
    A("s_endpgm")
    return name, kd(name, FB + 96), (256, 256, NS * SS)


def unpack8(A, dst, src):
    for j in range(4):
        A(f"v_lshlrev_b32 v{dst + 2 * j}, 16, v{src + j}")
        A(f"v_and_b32 v{dst + 2 * j + 1}, 0xffff0000, v{src + j}")


def pack8(A, dst, src):
    for j in range(4):
        A(f"v_cvt_pk_bf16_f32 v{dst + j}, v{src + 2 * j}, v{src + 2 * j + 1}")


def topk_rounds(A, keys, tmp, out_s, nrows, sW):
    w1 = sW[0]
    A(f"s_mov_b32 s{w1}, -1")
    for rnd, so in enumerate(out_s):
        for k, t in zip(keys, tmp):
            A(f"v_sub_u32 v{t}, s{w1}, v{k}")
        ts = list(tmp)
        m = ts[0]
        rest = ts[1:]
        while rest:
            if len(rest) >= 2:
                A(f"v_min3_u32 v{m}, v{m}, v{rest[0]}, v{rest[1]}")
                rest = rest[2:]
            else:
                A(f"v_min_u32 v{m}, v{m}, v{rest[0]}")
                rest = rest[1:]
        row_reduce(A, "v_min_u32", m)
        A("s_nop 0")
        for r in range(nrows):
            A(f"v_readlane_b32 s{sW[1 + r]}, v{m}, {16 * r}")
        A("s_nop 0")
        for r in range(1, nrows):
            A(f"s_min_u32 s{sW[1]}, s{sW[1]}, s{sW[1 + r]}")
        A(f"s_sub_u32 s{so}, s{w1}, s{sW[1]}")
        A(f"s_sub_u32 s{w1}, s{so}, 1")
        A("s_nop 0")


def h_from_pqx(A, P, Q, X, H, T):
    unpack8(A, H, P)
    unpack8(A, T, Q)
    for j in range(8):
        A(f"v_sub_f32 v{H + j}, v{H + j}, v{T + j}")
    pack8(A, P, H)
    unpack8(A, H, P)


def h_add_x(A, P, X, H, T):
    unpack8(A, T, X)
    for j in range(8):
        A(f"v_add_f32 v{H + j}, v{H + j}, v{T + j}")
    pack8(A, P, H)
    unpack8(A, H, P)


def gen_k3(A):
    name = "k3_tail_kernel"
    kernel_header(A, name)
    A("""
    s_cmp_ge_u32 s2, 272
    s_cbranch_scc1 L_k3_end
    """)
    stamp(A, 0)
    A("""
    s_load_dwordx2 s[4:5], s[0:1], 0
    s_load_dwordx8 s[40:47], s[0:1], 48
    s_load_dwordx2 s[8:9], s[0:1], 80
    s_load_dwordx2 s[12:13], s[0:1], 96
    v_and_b32 v1, 63, v0
    v_lshrrev_b32 v2, 6, v0
    s_nop 0
    v_readfirstlane_b32 s33, v2
    v_lshlrev_b32 v3, 4, v1
    s_mov_b32 s32, 0x200000
    s_waitcnt lgkmcnt(0)
    """)
    srd(A, 16, 4, 2 << 20)
    srd(A, 20, 40, 1024)
    srd(A, 24, 8, 2 << 20)
    srd_off(A, 28, 12, WS_P, 7 << 20)
    A("""
    s_cmp_ge_u32 s2, 128
    s_cbranch_scc1 L_k3_roles
    """)
    A("""
    s_lshl_b32 s3, s2, 4
    s_lshl_b32 s34, s33, 1
    s_add_u32 s3, s3, s34
    s_lshl_b32 s34, s3, 10
    v_add_u32 v4, s34, v3
    buffer_load_dwordx4 v[20:23], v3, s[20:23], 0 offen
    """)
    for rr in range(2):
        o = 56 * rr
        A(f"buffer_load_dwordx4 {vr(8 + o, 4)}, v4, s[28:31], 0 offen offset:{rr * 1024}")
        A(f"buffer_load_dwordx4 {vr(12 + o, 4)}, v4, s[28:31], s32 offen offset:{rr * 1024}")
        A(f"buffer_load_dwordx4 {vr(16 + o, 4)}, v4, s[16:19], 0 offen offset:{rr * 1024}")
    class Rec:
        def __init__(self):
            self.l = []

        def __call__(self, t):
            for ln in t.strip("\n").split("\n"):
                ln = ln.strip()
                if ln:
                    self.l.append(ln)

    streams = []
    for rr in range(2):
        R = Rec()
        o = 56 * rr
        P, Q, X, H, T, U = 8 + o, 12 + o, 16 + o, 24 + o, 32 + o, 40 + o
        a5, a6, a7 = (5, 6, 7) if rr == 0 else (61, 62, 63)
        K0 = 48 + o
        sk = 34 + rr
        cc = "vcc" if rr == 0 else "s[70:71]"
        h_from_pqx(R, P, Q, X, H, T)
        h_add_x(R, P, X, H, T)
        R(f"""
        v_add_f32 v{a5}, v{H}, v{H + 1}
        v_add_f32 v{a6}, v{H + 2}, v{H + 3}
        v_add_f32 v{a5}, v{a5}, v{H + 4}
        v_add_f32 v{a6}, v{a6}, v{H + 5}
        v_add_f32 v{a5}, v{a5}, v{H + 6}
        v_add_f32 v{a6}, v{a6}, v{H + 7}
        v_add_f32 v{a5}, v{a5}, v{a6}
        """)
        wave_sum(R, a5, a6)
        R(f"v_mul_f32 v{a5}, 0x3b000000, v{a5}")
        for j in range(8):
            R(f"v_sub_f32 v{T + j}, v{H + j}, v{a5}")
        R(f"v_mul_f32 v{a6}, v{T}, v{T}")
        for j in range(1, 8):
            R(f"v_fmac_f32 v{a6}, v{T + j}, v{T + j}")
        wave_sum(R, a6, a7)
        R(f"v_mul_f32 v{a6}, 0x3b000000, v{a6}")
        bf16_round(R, a6)
        R(f"v_add_f32 v{a6}, 0x3727c5ac, v{a6}")
        bf16_round(R, a6)
        R(f"v_sqrt_f32 v{a6}, v{a6}")
        R("s_nop 0")
        bf16_round(R, a6)
        bf16_round(R, a5)
        R(f"v_lshrrev_b32 v{K0 + 1}, 16, v{a5}")
        R(f"v_or_b32 v{K0 + 1}, v{K0 + 1}, v{a6}")
        R(f"v_rcp_f32 v{a6}, v{a6}")
        for j in range(8):
            R(f"v_sub_f32 v{T + j}, v{H + j}, v{a5}")
        pack8(R, Q, T)
        unpack8(R, T, Q)
        for j in range(8):
            R(f"v_mul_f32 v{T + j}, v{T + j}, v{a6}")
        pack8(R, Q, T)
        unpack8(R, T, Q)
        unpack8(R, U, 20)
        R(f"v_mul_f32 v{a7}, v{T}, v{U}")
        for j in range(1, 8):
            R(f"v_fmac_f32 v{a7}, v{T + j}, v{U + j}")
        wave_sum(R, a7, a6)
        R(f"""
        v_cvt_pk_bf16_f32 v{a7}, v{a7}, v{a7}
        v_and_b32 v{a7}, 0xffff, v{a7}
        v_xor_b32 v{a5}, 0xffff, v{a7}
        v_or_b32 v{a6}, 0x8000, v{a7}
        v_cmp_lt_u32 {cc}, s72, v{a7}
        s_nop 1
        v_cndmask_b32 v{a7}, v{a6}, v{a5}, {cc}
        v_lshlrev_b32 v{a7}, 16, v{a7}
        s_sub_u32 s{sk}, {0xfff - rr}, s3
        v_or_b32 v{K0}, s{sk}, v{a7}
        """)
        streams.append(R.l)
    A("s_movk_i32 s72, 0x7fff")
    A("s_waitcnt vmcnt(0)")
    stamp(A, 1)
    for x, y in zip(streams[0], streams[1]):
        A(x)
        A(y)
    A(f"""
    v_mov_b32 v50, v104
    v_mov_b32 v51, v105
    s_lshl_b32 s34, s3, 3
    s_add_u32 s34, s34, {WS_REC - WS_P}
    v_mov_b32 v5, s34
    s_mov_b64 exec, 1
    buffer_store_dwordx4 v[48:51], v5, s[28:31], 0 offen sc1
    s_mov_b64 exec, -1
    """)
    for rr in range(2):
        o = 56 * rr
        X, H, T, U = 16 + o, 24 + o, 32 + o, 40 + o
        for j in range(8):
            A(f"v_add_f32 v{U + j}, v{H + j}, v{T + j}")
        pack8(A, X, U)
        A(f"buffer_store_dwordx4 {vr(X, 4)}, v4, s[24:27], 0 offen offset:{rr * 1024} sc1")
    stamp(A, 2)
    A(f"""
    s_lshl_b32 s34, s2, 2
    s_add_u32 s34, s34, {WS_FLAGA - WS_P}
    v_mov_b32 v5, s34
    v_mov_b32 v6, 1
    s_waitcnt vmcnt(0)
    s_barrier
    s_cmp_lg_u32 s33, 0
    s_cbranch_scc1 L_k3_fin
    s_mov_b64 exec, 1
    buffer_store_dword v6, v5, s[28:31], 0 offen sc1
    s_mov_b64 exec, -1
    s_branch L_k3_fin
    """)
    A.label("L_k3_roles")
    A("""
    s_cmp_ge_u32 s2, 240
    s_cbranch_scc1 L_k3_dn_dma
    s_sub_u32 s69, s2, 128
    """)
    A("""
    s_and_b32 s34, s69, 7
    s_mul_i32 s34, s34, 14
    s_lshr_b32 s35, s69, 3
    s_add_u32 s36, s34, s35
    s_lshl_b32 s36, s36, 5
    v_lshrrev_b32 v5, 1, v1
    s_lshl_b32 s34, s33, 6
    v_add_u32 v5, s34, v5
    s_movk_i32 s35, 3584
    v_mul_lo_u32 v5, v5, s35
    v_and_b32 v6, 1, v1
    v_lshl_add_u32 v5, v6, 4, v5
    v_add_u32 v5, s36, v5
    s_lshl_b32 s37, s33, 11
    """)
    srd(A, 60, 42, 512 * 1792 * 2)
    srd(A, 64, 44, 512 * 1792 * 2)
    for mat in range(2):
        for i in range(2):
            A(f"s_add_u32 s38, s37, {mat * 16384 + i * 1024}")
            A("s_mov_b32 m0, s38")
            A(f"s_mov_b32 s39, {i * 32 * 3584}")
            A(f"buffer_load_dwordx4 v5, {sr(60 + mat * 4, 4)}, s39 offen lds")
    A("s_branch L_k3_poll")
    A.label("L_k3_dn_dma")
    A("""
    s_sub_u32 s34, s2, 240
    s_and_b32 s35, s34, 7
    s_lshl_b32 s35, s35, 2
    s_lshr_b32 s34, s34, 3
    s_add_u32 s36, s35, s34
    s_lshl_b32 s36, s36, 5
    s_mul_i32 s34, s33, 224
    v_lshrrev_b32 v5, 1, v1
    v_add_u32 v5, s34, v5
    v_lshlrev_b32 v5, 10, v5
    v_and_b32 v6, 1, v1
    v_lshl_add_u32 v5, v6, 4, v5
    v_add_u32 v5, s36, v5
    s_mul_i32 s37, s33, 7*1024
    """)
    srd(A, 60, 46, 1792 * 512 * 2)
    for i in range(7):
        A(f"s_add_u32 s38, s37, {i * 1024}")
        A("s_mov_b32 m0, s38")
        A(f"s_mov_b32 s39, {i * 32 * 1024}")
        A("buffer_load_dwordx4 v5, s[60:63], s39 offen lds")
    A.label("L_k3_poll")
    A(f"""
    v_lshlrev_b32 v6, 5, v0
    v_add_u32 v6, {WS_REC - WS_P}, v6
    """)
    stamp(A, 7)
    A(f"s_sleep {SLEEP0}")
    A.label("L_k3_poll_loop")
    A("""
    buffer_load_dwordx4 v[8:11], v6, s[28:31], 0 offen sc1
    buffer_load_dwordx4 v[12:15], v6, s[28:31], 0 offen offset:16 sc1
    s_waitcnt vmcnt(0)
    v_min_u32 v7, v8, v10
    v_min3_u32 v7, v7, v12, v14
    v_cmp_eq_u32 vcc, 0, v7
    s_cbranch_vccz L_k3_poll_done
    s_sleep 8
    s_branch L_k3_poll_loop
    """)
    A.label("L_k3_poll_done")
    stamp(A, 3)
    CAND = 86144 + 4096
    topk_rounds(A, [8, 10, 12, 14], [16, 17, 18, 19], list(range(48, 56)), 4, [56, 57, 58, 59, 68])
    A("v_mov_b32 v7, 0")
    for c in range(8):
        A(f"v_writelane_b32 v7, s{48 + c}, {c}")
    A(f"""
    s_lshl_b32 s38, s33, 5
    s_add_u32 s38, s38, {CAND}
    v_lshlrev_b32 v16, 2, v1
    v_add_u32 v17, s38, v16
    s_mov_b64 exec, 0xff
    ds_write_b32 v17, v7
    s_mov_b64 exec, -1
    s_waitcnt lgkmcnt(0)
    s_barrier
    v_add_u32 v16, {CAND}, v16
    ds_read_b32 v8, v16
    s_waitcnt lgkmcnt(0)
    """)
    topk_rounds(A, [8], [16], list(range(48, 56)), 4, [56, 57, 58, 59, 68])
    stamp(A, 4)
    A("""
    s_cmp_ge_u32 s2, 240
    s_cbranch_scc1 L_k3_dn
    """)
    XS = 32768
    A("v_mov_b32 v7, 0")
    for c in range(8):
        A(f"v_writelane_b32 v7, s{48 + c}, {c}")
    A(f"""
    s_nop 0
    v_readlane_b32 s38, v7, s33
    s_and_b32 s38, s38, 0x7ff
    s_sub_u32 s38, 0x7ff, s38
    s_lshl_b32 s39, s38, 3
    s_add_u32 s39, s39, {WS_REC - WS_P}
    s_lshl_b32 s38, s38, 10
    v_add_u32 v4, s38, v3
    v_mov_b32 v5, s39
    buffer_load_dwordx4 v[8:11], v4, s[28:31], 0 offen
    buffer_load_dwordx4 v[12:15], v4, s[28:31], s32 offen
    buffer_load_dwordx4 v[16:19], v4, s[16:19], 0 offen
    buffer_load_dwordx2 v[20:21], v5, s[28:31], 0 offen sc1
    s_mul_i32 s38, s33, 1040
    s_add_u32 s38, s38, {XS}
    v_add_u32 v22, s38, v3
    s_waitcnt vmcnt(2)
    """)
    h_from_pqx(A, 8, 12, 16, 24, 32)
    A("s_waitcnt vmcnt(1)")
    h_add_x(A, 8, 16, 24, 32)
    A("""
    s_waitcnt vmcnt(0)
    v_lshlrev_b32 v5, 16, v21
    v_and_b32 v6, 0xffff0000, v21
    v_rcp_f32 v6, v6
    """)
    for j in range(8):
        A(f"v_sub_f32 v{32 + j}, v{24 + j}, v5")
    pack8(A, 12, 32)
    unpack8(A, 32, 12)
    for j in range(8):
        A(f"v_mul_f32 v{32 + j}, v{32 + j}, v6")
    pack8(A, 12, 32)
    A(f"""
    ds_write_b128 v22, v[12:15]
    v_and_b32 v8, 7, v1
    s_movk_i32 s38, 1040
    v_mul_lo_u32 v8, v8, s38
    v_lshrrev_b32 v9, 4, v1
    v_lshl_add_u32 v8, v9, 3, v8
    s_lshl_b32 s38, s33, 7
    s_add_u32 s38, s38, {XS}
    v_add_u32 v8, s38, v8
    v_lshlrev_b32 v10, 3, v1
    v_add_u32 v10, s37, v10
    s_waitcnt lgkmcnt(0)
    s_barrier
    """)
    stamp(A, 5)
    AF = 32
    BF = 48
    for c in range(2):
        A(f"ds_read_b64 {vr(AF + c * 4, 2)}, v8 offset:{c * 64}")
        A(f"ds_read_b64 {vr(AF + c * 4 + 2, 2)}, v8 offset:{c * 64 + 32}")
    for mat in range(2):
        for c in range(2):
            b = BF + (mat * 2 + c) * 4
            A(f"ds_read_b64_tr_b16 {vr(b, 2)}, v10 offset:{mat * 16384 + c * 1024}")
            A(f"ds_read_b64_tr_b16 {vr(b + 2, 2)}, v10 offset:{mat * 16384 + c * 1024 + 512}")
    A("s_waitcnt lgkmcnt(0)")
    for c in range(2):
        for mat in range(2):
            acc = vr(80 + mat * 4, 4)
            cc = "0" if c == 0 else acc
            A(f"v_mfma_f32_16x16x32_bf16 {acc}, {vr(AF + c * 4, 4)}, {vr(BF + (mat * 2 + c) * 4, 4)}, {cc}")
    REDU = 41472
    A(f"""
    s_lshl_b32 s38, s33, 10
    s_add_u32 s38, s38, {REDU}
    v_add_u32 v12, s38, v3
    s_nop 7
    s_mov_b64 exec, 0xffffffff
    ds_write_b128 v12, v[80:83]
    ds_write_b128 v12, v[84:87] offset:512
    s_mov_b64 exec, -1
    s_waitcnt lgkmcnt(0)
    s_barrier
    s_cmp_lg_u32 s33, 0
    s_cbranch_scc1 L_k3_fin
    s_mov_b64 exec, 0xffffffff
    """)
    for w in range(8):
        for mat in range(2):
            A(f"ds_read_b128 {vr(32 + (w * 2 + mat) * 4, 4)}, v3 offset:{REDU + w * 1024 + mat * 512}")
    A("s_waitcnt lgkmcnt(0)")
    for mat in range(2):
        for r in range(4):
            d = 32 + mat * 4 + r
            for w in (1, 3, 5, 7):
                A(f"v_add_f32 v{d + (w - 1) * 8}, v{d + (w - 1) * 8}, v{d + w * 8}")
            A(f"v_add_f32 v{d}, v{d}, v{d + 16}")
            A(f"v_add_f32 v{d + 32}, v{d + 32}, v{d + 48}")
            A(f"v_add_f32 v{d}, v{d}, v{d + 32}")
            bf16_round(A, d)
    for r in range(4):
        g = 32 + r
        u = 36 + r
        t = 40 + r
        A(f"v_mul_f32 v{t}, 0xbfb8aa3b, v{g}")
        A(f"v_exp_f32 v{t}, v{t}")
        A("s_nop 0")
        A(f"v_add_f32 v{t}, 1.0, v{t}")
        A(f"v_rcp_f32 v{t}, v{t}")
        A("s_nop 0")
        A(f"v_mul_f32 v{g}, v{g}, v{t}")
        bf16_round(A, g)
        A(f"v_mul_f32 v{g}, v{g}, v{u}")
        A(f"v_cvt_pk_bf16_f32 v{g}, v{g}, v{g}")
        A(f"v_and_b32 v{g}, 0xffff, v{g}")
        A(f"v_min_u32 v{g}, 0xfffe, v{g}")
    A(f"""
    v_lshrrev_b32 v9, 4, v1
    s_movk_i32 s38, 3584*4
    v_mul_lo_u32 v9, v9, s38
    v_and_b32 v10, 15, v1
    v_lshl_add_u32 v9, v10, 1, v9
    s_add_u32 s38, s36, {WS_ACT - WS_P}
    v_add_u32 v9, s38, v9
    """)
    for r in range(4):
        A(f"s_mov_b32 s39, {r * 3584}")
        A(f"buffer_store_short v{32 + r}, v9, s[28:31], s39 offen sc1")
    A("s_branch L_k3_fin")
    A.label("L_k3_dn")
    ACTL = 57344
    REDD = 86144
    G = 96
    A("""
    v_mov_b32 v16, 0
    v_mov_b32 v17, 0
    v_mov_b32 v18, 0
    v_mov_b32 v19, 0
    s_cmp_lg_u32 s33, 0
    s_cbranch_scc1 L_k3_dn_nog
    v_cmp_lt_u32 vcc, 15, v1
    v_and_b32 v10, 15, v1
    v_lshlrev_b32 v10, 1, v10
    v_add_u32 v10, s36, v10
    """)
    for r in range(4):
        A(f"v_mov_b32 v{12 + r}, s{48 + r}")
        A(f"v_mov_b32 v24, s{52 + r}")
        A(f"v_cndmask_b32 v{12 + r}, v{12 + r}, v24, vcc")
        A(f"v_and_b32 v{16 + r}, 0x7ff, v{12 + r}")
        A(f"v_sub_u32 v{16 + r}, 0x7ff, v{16 + r}")
        A(f"v_lshlrev_b32 v{20 + r}, 3, v{16 + r}")
        A(f"v_add_u32 v{20 + r}, {WS_REC - WS_P + 4}, v{20 + r}")
        A(f"v_lshl_add_u32 v{16 + r}, v{16 + r}, 10, v10")
    A("s_mov_b64 exec, 0xffffffff")
    for r in range(4):
        A(f"buffer_load_ushort v{G + r}, v{16 + r}, s[28:31], 0 offen")
        A(f"buffer_load_ushort v{G + 4 + r}, v{16 + r}, s[28:31], s32 offen")
        A(f"buffer_load_dword v{G + 8 + r}, v{20 + r}, s[28:31], 0 offen sc1")
        A(f"buffer_load_ushort v{G + 12 + r}, v{16 + r}, s[16:19], 0 offen")
    A("s_mov_b64 exec, -1")
    A.label("L_k3_dn_nog")
    A(f"""
    v_and_b32 v6, 31, v1
    v_lshlrev_b32 v6, 4, v6
    v_add_u32 v6, {WS_FLAGA - WS_P}, v6
    s_cmp_lg_u32 s33, 0
    s_cbranch_scc1 L_k3_fl_wait
    """)
    A.label("L_k3_fl_loop")
    A("""
    buffer_load_dwordx4 v[8:11], v6, s[28:31], 0 offen sc1
    s_waitcnt vmcnt(0)
    v_min_u32 v7, v8, v9
    v_min3_u32 v7, v7, v10, v11
    v_cmp_eq_u32 vcc, 0, v7
    s_cbranch_vccz L_k3_fl_wait
    s_sleep 8
    s_branch L_k3_fl_loop
    """)
    A.label("L_k3_fl_wait")
    A(f"""
    s_mul_i32 s38, s33, 3584
    s_add_u32 s38, s38, {WS_ACT - WS_P}
    v_add_u32 v5, s38, v3
    s_mul_i32 s38, s33, 3600
    s_add_u32 s38, s38, {ACTL}
    v_add_u32 v6, s38, v3
    v_mov_b32 v44, 0
    v_mov_b32 v45, 0
    v_mov_b32 v46, 0
    v_mov_b32 v47, 0
    s_sleep {SLEEP1}
    """)
    A.label("L_k3_act_loop")
    for i in range(3):
        A(f"buffer_load_dwordx4 {vr(32 + i * 4, 4)}, v5, s[28:31], 0 offen offset:{i * 1024} sc1")
    A("""
    s_mov_b64 exec, 0xffffffff
    buffer_load_dwordx4 v[44:47], v5, s[28:31], 0 offen offset:3072 sc1
    s_mov_b64 exec, -1
    s_waitcnt vmcnt(0)
    v_pk_max_u16 v8, v32, v33
    """)
    for i in range(34, 48):
        A(f"v_pk_max_u16 v8, v8, v{i}")
    A("""
    v_lshrrev_b32 v9, 16, v8
    v_and_b32 v8, 0xffff, v8
    v_max_u32 v8, v8, v9
    v_cmp_eq_u32 vcc, 0xffff, v8
    s_cbranch_vccz L_k3_act_done
    s_sleep 4
    s_branch L_k3_act_loop
    """)
    A.label("L_k3_act_done")
    stamp(A, 5)
    for i in range(3):
        A(f"ds_write_b128 v6, {vr(32 + i * 4, 4)} offset:{i * 1024}")
    A(f"""
    s_mov_b64 exec, 0xffffffff
    ds_write_b128 v6, v[44:47] offset:3072
    s_mov_b64 exec, -1
    v_lshlrev_b32 v7, 3, v1
    v_add_u32 v7, s37, v7
    v_and_b32 v5, 7, v1
    s_movk_i32 s38, 3600
    v_mul_lo_u32 v5, v5, s38
    v_lshrrev_b32 v6, 4, v1
    v_lshl_add_u32 v5, v6, 3, v5
    s_mul_i32 s38, s33, 448
    s_add_u32 s38, s38, {ACTL}
    v_add_u32 v5, s38, v5
    s_waitcnt lgkmcnt(0)
    s_barrier
    """)
    AF = 32
    BF = 64
    for c in range(7):
        A(f"ds_read_b64 {vr(AF + c * 4, 2)}, v5 offset:{c * 64}")
        A(f"ds_read_b64 {vr(AF + c * 4 + 2, 2)}, v5 offset:{c * 64 + 32}")
        b = BF + c * 4
        A(f"ds_read_b64_tr_b16 {vr(b, 2)}, v7 offset:{c * 1024}")
        A(f"ds_read_b64_tr_b16 {vr(b + 2, 2)}, v7 offset:{c * 1024 + 512}")
    A("s_waitcnt lgkmcnt(0)")
    for c in range(7):
        acc = vr(24, 4)
        cc = "0" if c == 0 else acc
        A(f"v_mfma_f32_16x16x32_bf16 {acc}, {vr(AF + c * 4, 4)}, {vr(BF + c * 4, 4)}, {cc}")
    A(f"""
    s_lshl_b32 s38, s33, 9
    s_add_u32 s38, s38, {REDD}
    v_add_u32 v8, s38, v3
    s_nop 7
    s_mov_b64 exec, 0xffffffff
    ds_write_b128 v8, v[24:27]
    s_mov_b64 exec, -1
    s_waitcnt lgkmcnt(0)
    s_barrier
    s_cmp_lg_u32 s33, 0
    s_cbranch_scc1 L_k3_fin
    s_mov_b64 exec, 0xffffffff
    """)
    A(f"v_add_u32 v8, {REDD}, v3")
    for w in range(8):
        A(f"ds_read_b128 {vr(32 + w * 4, 4)}, v8 offset:{w * 512}")
    A("s_waitcnt vmcnt(0) lgkmcnt(0)")
    for r in range(4):
        d = 32 + r
        for w in (1, 3, 5, 7):
            A(f"v_add_f32 v{d + (w - 1) * 4}, v{d + (w - 1) * 4}, v{d + w * 4}")
        A(f"v_add_f32 v{d}, v{d}, v{d + 8}")
        A(f"v_add_f32 v{d + 16}, v{d + 16}, v{d + 24}")
        A(f"v_add_f32 v{d}, v{d}, v{d + 16}")
    for r in range(4):
        d = 32 + r
        bf16_round(A, d)
        k = 12 + r
        t = 64
        A(f"v_lshrrev_b32 v{t}, 16, v{k}")
        A(f"v_and_b32 v{t + 1}, 0x7fff, v{t}")
        A(f"v_xor_b32 v{t + 2}, 0xffff, v{t}")
        A(f"v_cmp_lt_u32 vcc, 0x7fff, v{t}")
        A("s_nop 1")
        A(f"v_cndmask_b32 v{t}, v{t + 2}, v{t + 1}, vcc")
        A(f"v_lshlrev_b32 v{t}, 16, v{t}")
        A(f"v_mul_f32 v{t}, 0xbfb8aa3b, v{t}")
        A(f"v_exp_f32 v{t}, v{t}")
        A("s_nop 0")
        A(f"v_add_f32 v{t}, 1.0, v{t}")
        A(f"v_rcp_f32 v{t}, v{t}")
        A("s_nop 0")
        bf16_round(A, t)
        A(f"v_mul_f32 v{d}, v{d}, v{t}")
        bf16_round(A, d)
        p, q, st, x = G + r, G + 4 + r, G + 8 + r, G + 12 + r
        for z in (p, q, x):
            A(f"v_lshlrev_b32 v{z}, 16, v{z}")
        A(f"v_sub_f32 v{p}, v{p}, v{q}")
        bf16_round(A, p)
        A(f"v_add_f32 v{p}, v{p}, v{x}")
        bf16_round(A, p)
        A(f"v_lshlrev_b32 v{q}, 16, v{st}")
        A(f"v_and_b32 v{st}, 0xffff0000, v{st}")
        A(f"v_rcp_f32 v{st}, v{st}")
        A(f"v_sub_f32 v{q}, v{p}, v{q}")
        bf16_round(A, q)
        A(f"v_mul_f32 v{q}, v{q}, v{st}")
        bf16_round(A, q)
        A(f"v_add_f32 v{q}, v{q}, v{d}")
        bf16_round(A, q)
        A(f"v_add_f32 v{p}, v{p}, v{q}")
        A(f"v_cvt_pk_bf16_f32 v{p}, v{p}, v{p}")
        A(f"buffer_store_short v{p}, v{16 + r}, s[24:27], 0 offen sc1")
    A.label("L_k3_fin")
    A("s_waitcnt vmcnt(0)") if STAMPS else None
    stamp(A, 6)
    stamp_dump(A, 9, 2, 12)
    A.label("L_k3_end")
    A("s_endpgm")
    return name, kd(name, 112), (272, 512, CAND + 256)


HEADER = """; Generated by dev/gen.py -- 3-launch list:
"""


def main():
    global STAMPS, PF_SCHED
    if len(sys.argv) > 2 and sys.argv[2] == "stamps":
        STAMPS = True
    global SLEEP0
    if len(sys.argv) > 3:
        SLEEP0 = int(sys.argv[3])
    A = Asm()
    gens = [gen_k1, gen_k2, gen_k3]
    kds = []
    launches = []
    for g in gens:
        name, kdtext, (grid, block, lds) = g(A)
        kds.append(kdtext)
        launches.append(f"; @launch kernel={name} grid=({grid},1,1) block=({block},1,1) lds={lds}")
    out = HEADER + "\n".join(launches) + "\n"
    out += '.amdgcn_target "amdgcn-amd-amdhsa--gfx950"\n.text\n'
    out += A.text()
    out += '.section .rodata,"a"\n' + "".join(kds)
    path = sys.argv[1] if len(sys.argv) > 1 else f"cdna_kernels/{NAME}.s"
    open(path, "w").write(out)


if __name__ == "__main__":
    main()
```

```python
import sys

NAME = "sequential_preLN__spectral_fnet__moe_arch_mod__prompt"

WS_BF = 0
WS_P = 4 << 20
WS_Q = 6 << 20
WS_HN = 8 << 20
WS_KEYS = 10 << 20
WS_ACT = (10 << 20) + 65536
WS_SEL = (10 << 20) + 131072
WS_REC = (10 << 20) + 262144
WS_FLAG = WS_REC + 16384
WS_FLAGA = WS_REC + 17408
WS_TOTAL = 11 << 20


class Asm:
    def __init__(self):
        self.lines = []

    def __call__(self, s):
        for ln in s.strip("\n").split("\n"):
            ln = ln.strip()
            if ln:
                self.lines.append("    " + ln)

    def label(self, s):
        self.lines.append(s + ":")

    def raw(self, s):
        self.lines.append(s)

    def text(self):
        return "\n".join(self.lines) + "\n"


def vr(a, n):
    return f"v[{a}:{a + n - 1}]"


def sr(a, n):
    return f"s[{a}:{a + n - 1}]"


def srd(A, d, base, nbytes):
    A(f"s_mov_b32 s{d}, s{base}")
    A(f"s_and_b32 s{d + 1}, s{base + 1}, 0xffff")
    A(f"s_mov_b32 s{d + 2}, {nbytes:#x}")
    A(f"s_mov_b32 s{d + 3}, 0x00020000")


def srd_off(A, d, base, off, nbytes):
    A(f"s_add_u32 s{d}, s{base}, {off:#x}")
    A(f"s_addc_u32 s{d + 1}, s{base + 1}, 0")
    A(f"s_and_b32 s{d + 1}, s{d + 1}, 0xffff")
    A(f"s_mov_b32 s{d + 2}, {nbytes:#x}")
    A(f"s_mov_b32 s{d + 3}, 0x00020000")


DPP = "row_mask:0xf bank_mask:0xf"


def row_reduce(A, op, v):
    A("s_nop 1")
    A(f"{op}_dpp v{v}, v{v}, v{v} quad_perm:[1,0,3,2] {DPP}")
    A("s_nop 1")
    A(f"{op}_dpp v{v}, v{v}, v{v} quad_perm:[2,3,0,1] {DPP}")
    A("s_nop 1")
    A(f"{op}_dpp v{v}, v{v}, v{v} row_half_mirror {DPP}")
    A("s_nop 1")
    A(f"{op}_dpp v{v}, v{v}, v{v} row_mirror {DPP}")


def cross_rows_sum(A, v, tmp):
    A(f"v_mov_b32 v{tmp}, v{v}")
    A("s_nop 1")
    A(f"v_permlane16_swap_b32 v{v}, v{tmp}")
    A("s_nop 1")
    A(f"v_add_f32 v{v}, v{v}, v{tmp}")
    A(f"v_mov_b32 v{tmp}, v{v}")
    A("s_nop 1")
    A(f"v_permlane32_swap_b32 v{v}, v{tmp}")
    A("s_nop 1")
    A(f"v_add_f32 v{v}, v{v}, v{tmp}")


def wave_sum(A, v, tmp):
    row_reduce(A, "v_add_f32", v)
    cross_rows_sum(A, v, tmp)


def bf16_round(A, v):
    A(f"v_cvt_pk_bf16_f32 v{v}, v{v}, v{v}")
    A(f"v_lshlrev_b32 v{v}, 16, v{v}")


STAMPS = False
SLEEP0 = 32
ROT = 4
K3LDS = 0
SLEEP1 = 50
PF_SCHED = [3, 3, 4, 4, 4, 9, 9, 9]
WS_STAMP = 12 << 20


def stamp(A, i):
    if STAMPS:
        A(f"s_memtime s[90:91]")
        A("s_waitcnt lgkmcnt(0)")
        A(f"s_mov_b32 s{76 + i}, s90")


def stamp_dump(A, n, kidx, ws_lo):
    if STAMPS:
        A("s_mov_b64 exec, -1")
        A("v_mov_b32 v1, 0")
        for i in range(n):
            A(f"s_sub_u32 s91, s{76 + i}, s76")
            A(f"v_writelane_b32 v1, s91, {i}")
        A(f"s_add_u32 s92, s{ws_lo}, {WS_STAMP + kidx * (1 << 20):#x}")
        A(f"s_addc_u32 s93, s{ws_lo + 1}, 0")
        A("s_and_b32 s93, s93, 0xffff")
        A("s_mov_b32 s94, 0x100000")
        A("s_mov_b32 s95, 0x00020000")
        A("v_lshlrev_b32 v2, 2, v0")
        A("s_lshl_b32 s91, s2, 12")
        A("v_add_u32 v2, s91, v2")
        A("buffer_store_dword v1, v2, s[92:95], 0 offen")


def kernel_header(A, name):
    A.raw(f".globl {name}")
    A.raw(".p2align 8")
    A.raw(f".type {name},@function")
    A.label(name)


def kd(name, vgpr, sgpr=96):
    acc = (vgpr + 3) // 4 * 4
    return f""".p2align 6
.amdhsa_kernel {name}
  .amdhsa_next_free_vgpr {vgpr}
  .amdhsa_next_free_sgpr {sgpr}
  .amdhsa_accum_offset {acc}
  .amdhsa_group_segment_fixed_size 0
  .amdhsa_kernarg_size 104
  .amdhsa_user_sgpr_count 2
  .amdhsa_user_sgpr_kernarg_segment_ptr 1
  .amdhsa_system_sgpr_workgroup_id_x 1
  .amdhsa_float_denorm_mode_32 3
.end_amdhsa_kernel
"""


def gen_k1(A):
    name = "k1_lngemm_kernel"
    kernel_header(A, name)
    A("""
    s_cmp_ge_u32 s2, 256
    s_cbranch_scc1 L_k1_end
    """)
    stamp(A, 0)
    A("""
    s_load_dwordx2 s[4:5], s[0:1], 0
    s_load_dwordx8 s[44:51], s[0:1], 8
    s_load_dwordx2 s[12:13], s[0:1], 96
    s_and_b32 s27, s2, 7
    s_lshr_b32 s26, s2, 3
    s_lshr_b32 s30, s26, 3
    s_lshl_b32 s28, s27, 2
    s_add_u32 s28, s28, s30
    s_and_b32 s29, s26, 7
    v_and_b32 v1, 63, v0
    v_lshrrev_b32 v2, 6, v0
    s_nop 0
    v_readfirstlane_b32 s30, v2
    s_and_b32 s32, s30, 1
    s_lshr_b32 s31, s30, 1
    """)
    WL = 32768
    A("""
    v_and_b32 v8, 15, v1
    v_lshrrev_b32 v9, 4, v1
    v_lshlrev_b32 v10, 4, v1
    """)
    A("""
    s_lshl_b32 s33, s28, 6
    s_lshl_b32 s34, s30, 3
    s_add_u32 s33, s33, s34
    v_add_u32 v2, s33, v9
    v_lshlrev_b32 v2, 10, v2
    v_lshl_add_u32 v2, v8, 4, v2
    """)
    A("""
    s_lshl_b32 s33, s32, 7
    v_xor_b32 v4, s33, v10
    s_and_b32 s33, s29, 3
    s_lshl_b32 s33, s33, 7
    s_lshl_b32 s34, s30, 4
    s_add_u32 s33, s33, s34
    s_lshl_b32 s33, s33, 10
    s_lshl_b32 s34, s30, 14
    """)
    A(f"s_add_u32 s34, s34, {WL}")
    A("""
    s_lshr_b32 s35, s27, 1
    s_lshl_b32 s35, s35, 21
    s_lshl_b32 s36, s26, 16
    s_add_u32 s35, s35, s36
    s_lshl_b32 s36, s30, 13
    s_add_u32 s35, s35, s36
    v_lshlrev_b32 v5, 7, v1
    v_add_u32 v5, s35, v5
    """)
    A("""
    s_and_b32 s37, s29, 3
    s_lshl_b32 s37, s37, 1
    s_lshr_b32 s38, s30, 2
    s_add_u32 s37, s37, s38
    s_lshr_b32 s36, s29, 2
    s_lshl_b32 s35, s36, 21
    s_lshl_b32 s37, s37, 18
    s_add_u32 s35, s35, s37
    s_lshl_b32 s37, s28, 13
    s_add_u32 s35, s35, s37
    s_and_b32 s37, s31, 1
    s_lshl_b32 s37, s37, 12
    s_add_u32 s35, s35, s37
    s_lshl_b32 s37, s32, 10
    s_add_u32 s35, s35, s37
    v_add_u32 v3, s35, v10
    s_waitcnt lgkmcnt(0)
    """)
    srd(A, 16, 4, 2048 * 512 * 2)
    A("""
    s_cmp_eq_u32 s36, 0
    s_cselect_b32 s20, s48, s50
    s_cselect_b32 s21, s49, s51
    s_and_b32 s21, s21, 0xffff
    s_mov_b32 s22, 0x80000
    s_mov_b32 s23, 0x00020000
    s_and_b32 s37, s27, 1
    s_cmp_eq_u32 s37, 0
    s_cselect_b32 s52, s44, s46
    s_cselect_b32 s53, s45, s47
    s_and_b32 s53, s53, 0xffff
    s_mov_b32 s54, 0x800000
    s_mov_b32 s55, 0x00020000
    """)
    srd_off(A, 56, 12, WS_BF, 4 << 20)
    XB = 64
    for g in range(2):
        A(f"s_mov_b32 s38, {g * 4096}")
        for j in range(4):
            A(f"buffer_load_dwordx4 {vr(XB + (g * 4 + j) * 4, 4)}, v2, s[16:19], s38 offen offset:{j * 256}")
    for r4 in range(4):
        A(f"s_add_u32 s40, s34, {r4 * 4096}")
        A("s_mov_b32 m0, s40")
        A(f"s_add_u32 s41, s33, {r4 * 4096}")
        for rr in range(4):
            r = r4 * 4 + rr
            f = ((r >> 3) * 4 + (r & 3)) * 16
            A(f"v_xor_b32 v{12 + rr}, {f:#x}, v4")
            A(f"buffer_load_dwordx4 v{12 + rr}, s[20:23], s41 offen offset:{rr * 1024} lds")
    pfn = [0]
    sched = PF_SCHED

    def pf(point):
        waves = [w for w in range(8) if sched[w] == point]
        if not waves:
            return
        n = pfn[0]
        pfn[0] += 1
        mask = sum(1 << w for w in waves)
        A(f"s_mov_b32 s42, {mask}")
        A("s_bitcmp0_b32 s42, s30")
        A(f"s_cbranch_scc1 L_k1_pf{n}")
        A("buffer_load_dword v6, v5, s[52:55], 0 offen")
        A.label(f"L_k1_pf{n}")

    pf(0)
    stamp(A, 1)
    A("""
    s_and_b32 s40, s30, 3
    s_lshl_b32 s40, s40, 2
    v_add_u32 v14, s40, v9
    v_xor_b32 v14, v14, v8
    v_lshlrev_b32 v14, 4, v14
    s_lshl_b32 s40, s30, 3
    v_add_u32 v15, s40, v9
    v_lshl_add_u32 v16, v15, 9, v14
    v_add_u32 v17, 2048, v16
    """)
    A(f"""
    v_lshrrev_b32 v14, 2, v8
    v_lshlrev_b32 v14, 3, v14
    v_and_b32 v15, 3, v8
    v_add_u32 v14, v14, v15
    s_lshl_b32 s40, s32, 5
    v_add_u32 v15, s40, v14
    v_lshlrev_b32 v15, 9, v15
    s_lshl_b32 s40, s31, 5
    v_add_u32 v14, s40, v14
    v_lshlrev_b32 v14, 10, v14
    v_add_u32 v14, {WL}, v14
    """)
    for k3 in range(4):
        A(f"v_add_u32 v18, {k3 * 4}, v9")
        A("v_xor_b32 v18, v18, v8")
        A(f"v_lshl_add_u32 v{20 + k3}, v18, 4, v15")
        A(f"v_lshl_add_u32 v{24 + k3}, v18, 4, v14")
    A("v_mov_b32 v19, 0x3f803f80")
    A("s_waitcnt vmcnt(16)")
    stamp(A, 2)
    pf(1)
    T = 96
    NG = 2
    for g in range(NG):
        sm = 28 + g
        A(f"v_mov_b32 v{sm}, 0")
        for r in range(16):
            A(f"v_dot2_f32_bf16 v{sm}, v{XB + g * 16 + r}, v19, v{sm}")
    A("s_nop 1")
    for g in range(NG):
        row_reduce(A, "v_add_f32", 28 + g)
    for g in range(NG):
        sm = 28 + g
        mb = 32 + g
        A(f"v_mul_f32 v{sm}, 0x3b000000, v{sm}")
        A(f"v_mov_b32 v{mb}, v{sm}")
        bf16_round(A, mb)
        A(f"v_sub_f32 v{sm}, v{sm}, v{mb}")
    for g in range(NG):
        q0 = T + 8 + g * 2
        A(f"v_mov_b32 v{q0}, 0")
        A(f"v_mov_b32 v{q0 + 1}, 0")
        for r in range(16):
            x = XB + g * 16 + r
            t = T + 16 + (r & 3) * 2
            A(f"v_lshlrev_b32 v{t}, 16, v{x}")
            A(f"v_and_b32 v{t + 1}, 0xffff0000, v{x}")
            A(f"v_sub_f32 v{t}, v{t}, v{32 + g}")
            A(f"v_sub_f32 v{t + 1}, v{t + 1}, v{32 + g}")
            A(f"v_fmac_f32 v{q0}, v{t}, v{t}")
            A(f"v_fmac_f32 v{q0 + 1}, v{t + 1}, v{t + 1}")
            A(f"v_cvt_pk_bf16_f32 v{x}, v{t}, v{t + 1}")
        A(f"v_add_f32 v{36 + g}, v{q0}, v{q0 + 1}")
    pf(2)
    for g in range(NG):
        row_reduce(A, "v_add_f32", 36 + g)
    for g in range(NG):
        vv = 36 + g
        A(f"v_mul_f32 v{vv}, 0x3b000000, v{vv}")
        A(f"v_fma_f32 v{vv}, -v{28 + g}, v{28 + g}, v{vv}")
        A(f"v_max_f32 v{vv}, 0, v{vv}")
        bf16_round(A, vv)
        A(f"v_add_f32 v{vv}, 0x3727c5ac, v{vv}")
        bf16_round(A, vv)
        A(f"v_sqrt_f32 v{vv}, v{vv}")
        A("s_nop 0")
        bf16_round(A, vv)
        A(f"v_rcp_f32 v{T + g}, v{vv}")
    A("s_nop 0")
    for g in range(NG):
        for r in range(16):
            x = XB + g * 16 + r
            t = T + 16 + (r & 3) * 2
            A(f"v_lshlrev_b32 v{t}, 16, v{x}")
            A(f"v_and_b32 v{t + 1}, 0xffff0000, v{x}")
            A(f"v_mul_f32 v{t}, v{t}, v{T + g}")
            A(f"v_mul_f32 v{t + 1}, v{t + 1}, v{T + g}")
            A(f"v_cvt_pk_bf16_f32 v{x}, v{t}, v{t + 1}")
            if (r & 3) == 3 and (r >> 2) < 2:
                j = r >> 2
                A(f"ds_write_b128 v{16 + g}, {vr(XB + (g * 4 + j) * 4, 4)} offset:{j * 256}")
    pf(3)
    stamp(A, 3)
    ACC = 32
    FB = 96

    def rd_list(kc):
        fb = FB + (kc & 1) * 16
        kcl = kc & 7
        out = []
        for h in range(2):
            out.append(f"ds_read_b128 {vr(fb + h * 4, 4)}, v{20 + (kcl & 3)} offset:{h * 2048 + (kcl >> 2) * 256}")
        for i in range(2):
            out.append(f"ds_read_b128 {vr(fb + 8 + i * 4, 4)}, v{24 + (kc & 3)} offset:{i * 4096 + (kc >> 2) * 256}")
        return out

    A("""
    s_waitcnt vmcnt(1) lgkmcnt(0)
    """)
    A(f"s_mov_b32 s42, {sum(1 << w for w in range(8) if sched[w] <= 3)}")
    A("""
    s_bitcmp1_b32 s42, s30
    s_cbranch_scc1 L_k1_w1
    s_waitcnt vmcnt(0)
    """)
    A.label("L_k1_w1")
    A("s_barrier")
    stamp(A, 4)
    pf(4)
    for half in range(2):
        if half == 1:
            pf(6)
            A("s_barrier")
            for g in range(NG):
                for j in (2, 3):
                    A(f"ds_write_b128 v{16 + g}, {vr(XB + (g * 4 + j) * 4, 4)} offset:{(j - 2) * 256}")
            A("s_waitcnt lgkmcnt(0)")
            A("s_barrier")
        for ins in rd_list(half * 8):
            A(ins)
        for kcl in range(8):
            kc = half * 8 + kcl
            fb = FB + (kc & 1) * 16
            nxt = rd_list(kc + 1) if kcl < 7 else []
            for ins in nxt:
                A(ins)
            if kcl == 4:
                pf(5 + 2 * half)
            A(f"s_waitcnt lgkmcnt({len(nxt)})")
            for h in range(2):
                for ii in range(2):
                    acc = vr(ACC + (h * 2 + ii) * 4, 4)
                    a = vr(fb + h * 4, 4)
                    b = vr(fb + 8 + ii * 4, 4)
                    cc = "0" if kc == 0 else acc
                    A(f"v_mfma_f32_16x16x32_bf16 {acc}, {a}, {b}, {cc}")
    A("s_nop 7")
    A("s_nop 1")
    stamp(A, 5)
    for i in range(2):
        o = FB + i * 4
        t0 = ACC + (0 * 2 + i) * 4
        t1 = ACC + (1 * 2 + i) * 4
        A(f"v_cvt_pk_bf16_f32 v{o}, v{t0}, v{t0 + 1}")
        A(f"v_cvt_pk_bf16_f32 v{o + 1}, v{t0 + 2}, v{t0 + 3}")
        A(f"v_cvt_pk_bf16_f32 v{o + 2}, v{t1}, v{t1 + 1}")
        A(f"v_cvt_pk_bf16_f32 v{o + 3}, v{t1 + 2}, v{t1 + 3}")
        A(f"buffer_store_dwordx4 {vr(o, 4)}, v3, s[56:59], 0 offen offset:{i * 2048}")
    A("s_waitcnt vmcnt(0)") if STAMPS else None
    stamp(A, 6)
    stamp_dump(A, 7, 0, 12)
    A.label("L_k1_end")
    A("s_endpgm")
    return name, kd(name, 128), (256, 512, 163840)


def gen_k2(A, NS=6):
    name = "k2_gemm_kernel"
    kernel_header(A, name)
    A("""
    s_cmp_ge_u32 s2, 256
    s_cbranch_scc1 L_k2_end
    """)
    stamp(A, 0)
    A("""
    s_load_dwordx4 s[4:7], s[0:1], 8
    s_load_dwordx2 s[12:13], s[0:1], 96
    s_load_dwordx4 s[44:47], s[0:1], 56
    s_load_dwordx2 s[48:49], s[0:1], 72
    s_and_b32 s28, s2, 7
    s_lshr_b32 s29, s2, 3
    s_and_b32 s30, s28, 1
    s_lshr_b32 s31, s28, 1
    s_lshl_b32 s31, s31, 2
    s_lshr_b32 s32, s29, 3
    s_add_u32 s31, s31, s32
    s_and_b32 s32, s29, 7
    v_and_b32 v1, 63, v0
    v_lshrrev_b32 v2, 6, v0
    s_nop 0
    v_readfirstlane_b32 s33, v2
    """)
    SS = 24576
    A("""
    v_and_b32 v12, 15, v1
    v_lshrrev_b32 v13, 4, v1
    v_and_b32 v14, 7, v1
    v_lshrrev_b32 v15, 3, v1
    s_lshl_b32 s34, s31, 7
    s_lshl_b32 s35, s33, 5
    s_add_u32 s34, s34, s35
    v_add_u32 v2, s34, v15
    v_lshlrev_b32 v2, 12, v2
    v_xor_b32 v3, v14, v15
    v_lshl_add_u32 v8, v3, 4, v2
    """)
    for j in range(1, 4):
        A(f"v_add_u32 v{8 + j}, {j * 32768 - j * 1024:#x}, v8")
    A("""
    v_lshlrev_b32 v5, 4, v1
    s_lshl_b32 s35, s33, 11
    v_add_u32 v4, s35, v5
    """)
    A("""
    v_add_u32 v2, s34, v12
    v_lshlrev_b32 v6, 10, v2
    v_lshl_add_u32 v6, v13, 4, v6
    s_lshl_b32 s36, s30, 21
    s_lshl_b32 s37, s32, 7
    s_add_u32 s36, s36, s37
    v_add_u32 v6, s36, v6
    v_add_u32 v7, 0x4000, v6
    """)
    NH = (NS + 1) // 2
    A("""
    s_lshl_b32 s36, s33, 12
    v_lshlrev_b32 v2, 7, v12
    v_add_u32 v2, s36, v2
    v_xor_b32 v3, v13, v14
    v_lshl_add_u32 v16, v3, 4, v2
    v_xor_b32 v17, 64, v16
    v_add_u32 v18, 0x4000, v5
    """)
    for h in range(1, NH):
        for k in range(3):
            A(f"v_add_u32 v{16 + h * 3 + k}, {h * 2 * SS:#x}, v{16 + k}")
    A("""
    s_waitcnt lgkmcnt(0)
    s_cmp_eq_u32 s30, 0
    s_cselect_b32 s8, s4, s6
    s_cselect_b32 s9, s5, s7
    s_and_b32 s9, s9, 0xffff
    s_mov_b32 s10, 0x800000
    s_mov_b32 s11, 0x00020000
    """)
    A("""
    s_lshl_b32 s37, s30, 21
    s_lshl_b32 s38, s32, 18
    s_add_u32 s37, s37, s38
    s_add_u32 s16, s12, s37
    s_addc_u32 s17, s13, 0
    s_and_b32 s17, s17, 0xffff
    s_mov_b32 s18, 0x40000
    s_mov_b32 s19, 0x00020000
    s_add_u32 s37, s35, 16384
    """)
    srd_off(A, 20, 12, WS_P, 7 << 20)
    A(f"""
    s_cmp_ge_u32 s2, 53
    s_cbranch_scc1 L_k2_nz
    s_cmp_lg_u32 s33, 0
    s_cbranch_scc1 L_k2_nz
    s_lshl_b32 s38, s2, 10
    s_add_u32 s39, s38, {WS_ACT - WS_P - 25 * 1024}
    s_add_u32 s38, s38, {WS_REC - WS_P}
    s_cmp_lt_u32 s2, 25
    s_cselect_b32 s38, s38, s39
    s_cselect_b32 s39, 0, -1
    v_mov_b32 v32, s39
    v_mov_b32 v33, s39
    v_mov_b32 v34, s39
    v_mov_b32 v35, s39
    buffer_store_dwordx4 v[32:35], v5, s[20:23], s38 offen
    s_waitcnt vmcnt(0)
    """)
    A.label("L_k2_nz")
    A("""
    s_lshl_b32 s50, s29, 2
    s_add_u32 s50, s50, s33
    s_cmp_lt_u32 s50, 40
    s_cselect_b32 s52, s44, s46
    s_cselect_b32 s53, s45, s47
    s_cselect_b32 s51, 0, 40
    s_cmp_lt_u32 s50, 80
    s_cselect_b32 s52, s52, s48
    s_cselect_b32 s53, s53, s49
    s_cselect_b32 s51, s51, 80
    s_and_b32 s53, s53, 0xffff
    s_mov_b32 s54, 0x1c0000
    s_mov_b32 s55, 0x00020000
    s_sub_u32 s51, s50, s51
    s_lshl_b32 s51, s51, 6
    v_add_u32 v30, s51, v1
    s_mov_b32 s51, 52429
    v_mul_lo_u32 v31, v30, s51
    v_lshrrev_b32 v31, 18, v31
    v_mul_u32_u24 v29, 5, v31
    v_sub_u32 v29, v30, v29
    s_movk_i32 s51, 3584
    v_mul_lo_u32 v31, v31, s51
    v_lshl_add_u32 v31, v29, 7, v31
    s_mul_i32 s51, s28, 448
    s_and_b32 s51, s51, 0xffffff80
    v_add_u32 v31, s51, v31
    v_lshlrev_b32 v30, 10, v30
    s_lshl_b32 s51, s28, 7
    v_add_u32 v30, s51, v30
    s_cmp_lt_u32 s50, 80
    s_cselect_b64 vcc, -1, 0
    s_nop 1
    v_cndmask_b32 v30, v30, v31, vcc
    """)
    ACC = 32
    FB = 64
    KS = 32

    def issue_groups(step):
        st = step % NS
        g = []
        g.append([f"s_add_u32 s40, s36, {st * SS}", "s_mov_b32 m0, s40", f"s_add_u32 s41, s42, {step}",
                  "s_and_b32 s41, s41, 31", "s_lshl_b32 s39, s41, 7",
                  "buffer_load_dwordx4 v8, s[8:11], s39 offen lds"])
        for j in range(1, 4):
            g.append([f"buffer_load_dwordx4 v{8 + j}, s[8:11], s39 offen offset:{j * 1024} lds"])
        g.append([f"s_add_u32 s40, s37, {st * SS}", "s_mov_b32 m0, s40", "s_lshl_b32 s38, s41, 13",
                  "buffer_load_dwordx4 v4, s[16:19], s38 offen lds"])
        g.append(["buffer_load_dwordx4 v4, s[16:19], s38 offen offset:1024 lds"])
        return g

    def issue(step):
        for g in issue_groups(step):
            for ins in g:
                A(ins)

    def rd_list(step):
        st = step % NS
        h = st >> 1
        so = (st & 1) * SS
        fb = FB + (step & 1) * 48
        out = []
        for ks in range(2):
            for mt in range(4):
                out.append(f"ds_read_b128 {vr(fb + (ks * 4 + mt) * 4, 4)}, v{18 + h * 3} offset:{so + mt * 2048 + ks * 1024}")
            for nt in range(2):
                out.append(f"ds_read_b128 {vr(fb + 32 + (ks * 2 + nt) * 4, 4)}, v{16 + h * 3 + ks} offset:{so + nt * 2048}")
        return out

    def rd(step):
        for ins in rd_list(step):
            A(ins)

    A(f"s_mul_i32 s42, s32, {ROT}")
    stamp(A, 1)
    PRE = 3
    for s_ in range(PRE):
        issue(s_)
    issued = PRE
    stamp(A, 2)
    A(f"s_waitcnt vmcnt({6 * (PRE - 1)})")
    A("s_barrier")
    stamp(A, 3)
    rd(0)
    A("s_waitcnt lgkmcnt(0)")
    for i in range(KS):
        fb = FB + (i & 1) * 48
        if i + 1 < KS:
            A(f"s_waitcnt vmcnt({6 * (issued - 1 - (i + 1)) + (1 if i > KS - NS else 0)})")
            A("s_barrier")
            if i in (1, 2, 4, 8, 16, 24, 30):
                stamp(A, 4 + (1, 2, 4, 8, 16, 24, 30).index(i))
        if i == KS - NS:
            A("buffer_load_dword v29, v30, s[52:55], 0 offen")
        reads = rd_list(i + 1) if i + 1 < KS else []
        groups = []
        nst = 0
        while issued < KS and issued <= i + NS and nst < 2 and i + 1 < KS:
            groups += issue_groups(issued)
            issued += 1
            nst += 1
        if len(groups) <= 6:
            pos = {1: [0], 3: [1], 6: [2], 8: [3], 11: [4], 13: [5]}
        else:
            pos = {k: [k] for k in range(12)}
        n = 0
        for ks in range(2):
            for mt in range(4):
                for nt in range(2):
                    acc = vr(ACC + (mt * 2 + nt) * 4, 4)
                    a = vr(fb + (ks * 4 + mt) * 4, 4)
                    b = vr(fb + 32 + (ks * 2 + nt) * 4, 4)
                    cc = "0" if (i == 0 and ks == 0) else acc
                    A(f"v_mfma_f32_16x16x32_bf16 {acc}, {a}, {b}, {cc}")
                    if n < len(reads):
                        A(reads[n])
                    for gi in pos.get(n, []):
                        if gi < len(groups):
                            for ins in groups[gi]:
                                A(ins)
                    n += 1
        if i + 1 < KS:
            A("s_waitcnt lgkmcnt(0)")
    A("s_nop 7")
    A("s_nop 1")
    for nt in range(2):
        for grp in range(2):
            o = FB + (nt * 2 + grp) * 4
            t0 = ACC + ((2 * grp) * 2 + nt) * 4
            t1 = ACC + ((2 * grp + 1) * 2 + nt) * 4
            A(f"v_cvt_pk_bf16_f32 v{o}, v{t0}, v{t0 + 1}")
            A(f"v_cvt_pk_bf16_f32 v{o + 1}, v{t0 + 2}, v{t0 + 3}")
            A(f"v_cvt_pk_bf16_f32 v{o + 2}, v{t1}, v{t1 + 1}")
            A(f"v_cvt_pk_bf16_f32 v{o + 3}, v{t1 + 2}, v{t1 + 3}")
            A(f"buffer_store_dwordx4 {vr(o, 4)}, v{6 + nt}, s[20:23], 0 offen offset:{grp * 64}")
    A("s_waitcnt vmcnt(0)") if STAMPS else None
    stamp(A, 11)
    stamp_dump(A, 12, 1, 12)
    A.label("L_k2_end")
    A("s_endpgm")
    return name, kd(name, FB + 96), (256, 256, NS * SS)


def unpack8(A, dst, src):
    for j in range(4):
        A(f"v_lshlrev_b32 v{dst + 2 * j}, 16, v{src + j}")
        A(f"v_and_b32 v{dst + 2 * j + 1}, 0xffff0000, v{src + j}")


def pack8(A, dst, src):
    for j in range(4):
        A(f"v_cvt_pk_bf16_f32 v{dst + j}, v{src + 2 * j}, v{src + 2 * j + 1}")


def topk_rounds(A, keys, tmp, out_s, nrows, sW):
    w1 = sW[0]
    A(f"s_mov_b32 s{w1}, -1")
    for rnd, so in enumerate(out_s):
        for k, t in zip(keys, tmp):
            A(f"v_sub_u32 v{t}, s{w1}, v{k}")
        ts = list(tmp)
        m = ts[0]
        rest = ts[1:]
        while rest:
            if len(rest) >= 2:
                A(f"v_min3_u32 v{m}, v{m}, v{rest[0]}, v{rest[1]}")
                rest = rest[2:]
            else:
                A(f"v_min_u32 v{m}, v{m}, v{rest[0]}")
                rest = rest[1:]
        row_reduce(A, "v_min_u32", m)
        A("s_nop 0")
        for r in range(nrows):
            A(f"v_readlane_b32 s{sW[1 + r]}, v{m}, {16 * r}")
        A("s_nop 0")
        for r in range(1, nrows):
            A(f"s_min_u32 s{sW[1]}, s{sW[1]}, s{sW[1 + r]}")
        A(f"s_sub_u32 s{so}, s{w1}, s{sW[1]}")
        A(f"s_sub_u32 s{w1}, s{so}, 1")
        A("s_nop 0")


def h_from_pqx(A, P, Q, X, H, T):
    unpack8(A, H, P)
    unpack8(A, T, Q)
    for j in range(8):
        A(f"v_sub_f32 v{H + j}, v{H + j}, v{T + j}")
    pack8(A, P, H)
    unpack8(A, H, P)


def h_add_x(A, P, X, H, T):
    unpack8(A, T, X)
    for j in range(8):
        A(f"v_add_f32 v{H + j}, v{H + j}, v{T + j}")
    pack8(A, P, H)
    unpack8(A, H, P)


def gen_k3(A):
    name = "k3_tail_kernel"
    kernel_header(A, name)
    A("""
    s_cmp_ge_u32 s2, 256
    s_cbranch_scc1 L_k3_end
    """)
    stamp(A, 0)
    A("""
    s_load_dwordx2 s[4:5], s[0:1], 0
    s_load_dwordx8 s[40:47], s[0:1], 48
    s_load_dwordx2 s[8:9], s[0:1], 80
    s_load_dwordx2 s[12:13], s[0:1], 96
    v_and_b32 v1, 63, v0
    v_lshrrev_b32 v2, 6, v0
    s_nop 0
    v_readfirstlane_b32 s33, v2
    v_lshlrev_b32 v3, 4, v1
    s_mov_b32 s32, 0x200000
    s_waitcnt lgkmcnt(0)
    """)
    srd(A, 16, 4, 2 << 20)
    srd(A, 20, 40, 1024)
    srd(A, 24, 8, 2 << 20)
    srd_off(A, 28, 12, WS_P, 7 << 20)
    A("""
    s_lshl_b32 s3, s2, 3
    s_add_u32 s3, s3, s33
    s_lshl_b32 s34, s3, 10
    v_add_u32 v4, s34, v3
    buffer_load_dwordx4 v[8:11], v4, s[28:31], 0 offen
    buffer_load_dwordx4 v[12:15], v4, s[28:31], s32 offen
    buffer_load_dwordx4 v[16:19], v4, s[16:19], 0 offen
    buffer_load_dwordx4 v[20:23], v3, s[20:23], 0 offen
    s_waitcnt vmcnt(2)
    """)
    stamp(A, 1)
    P, Q, X, H, T, U = 8, 12, 16, 24, 32, 40
    a5, a6, a7 = 5, 6, 7
    K0 = 48
    h_from_pqx(A, P, Q, X, H, T)
    A("s_waitcnt vmcnt(1)")
    h_add_x(A, P, X, H, T)
    A(f"""
    v_add_f32 v{a5}, v{H}, v{H + 1}
    v_add_f32 v{a6}, v{H + 2}, v{H + 3}
    v_add_f32 v{a5}, v{a5}, v{H + 4}
    v_add_f32 v{a6}, v{a6}, v{H + 5}
    v_add_f32 v{a5}, v{a5}, v{H + 6}
    v_add_f32 v{a6}, v{a6}, v{H + 7}
    v_add_f32 v{a5}, v{a5}, v{a6}
    """)
    wave_sum(A, a5, a6)
    A(f"v_mul_f32 v{a5}, 0x3b000000, v{a5}")
    for j in range(8):
        A(f"v_sub_f32 v{T + j}, v{H + j}, v{a5}")
    A(f"v_mul_f32 v{a6}, v{T}, v{T}")
    for j in range(1, 8):
        A(f"v_fmac_f32 v{a6}, v{T + j}, v{T + j}")
    wave_sum(A, a6, a7)
    A(f"v_mul_f32 v{a6}, 0x3b000000, v{a6}")
    bf16_round(A, a6)
    A(f"v_add_f32 v{a6}, 0x3727c5ac, v{a6}")
    bf16_round(A, a6)
    A(f"v_sqrt_f32 v{a6}, v{a6}")
    A("s_nop 0")
    bf16_round(A, a6)
    bf16_round(A, a5)
    A(f"v_lshrrev_b32 v{K0 + 1}, 16, v{a5}")
    A(f"v_or_b32 v{K0 + 1}, v{K0 + 1}, v{a6}")
    A(f"v_rcp_f32 v{a6}, v{a6}")
    for j in range(8):
        A(f"v_sub_f32 v{T + j}, v{H + j}, v{a5}")
    pack8(A, Q, T)
    unpack8(A, T, Q)
    for j in range(8):
        A(f"v_mul_f32 v{T + j}, v{T + j}, v{a6}")
    pack8(A, Q, T)
    unpack8(A, T, Q)
    A("s_waitcnt vmcnt(0)")
    unpack8(A, U, 20)
    A(f"v_mul_f32 v{a7}, v{T}, v{U}")
    for j in range(1, 8):
        A(f"v_fmac_f32 v{a7}, v{T + j}, v{U + j}")
    wave_sum(A, a7, a6)
    A(f"""
    v_cvt_pk_bf16_f32 v{a7}, v{a7}, v{a7}
    v_and_b32 v{a7}, 0xffff, v{a7}
    v_xor_b32 v{a5}, 0xffff, v{a7}
    v_or_b32 v{a6}, 0x8000, v{a7}
    v_cmp_lt_u32 vcc, 0x7fff, v{a7}
    s_nop 1
    v_cndmask_b32 v{a7}, v{a6}, v{a5}, vcc
    v_lshlrev_b32 v{a7}, 16, v{a7}
    s_sub_u32 s34, 0xfff, s3
    v_or_b32 v{K0}, s34, v{a7}
    s_lshl_b32 s34, s3, 3
    s_add_u32 s34, s34, {WS_REC - WS_P}
    v_mov_b32 v5, s34
    s_mov_b64 exec, 1
    buffer_store_dwordx2 v[48:49], v5, s[28:31], 0 offen sc1
    s_mov_b64 exec, -1
    """)
    for j in range(8):
        A(f"v_add_f32 v{U + j}, v{H + j}, v{T + j}")
    pack8(A, X, U)
    A(f"buffer_store_dwordx4 {vr(X, 4)}, v4, s[24:27], 0 offen sc1")
    stamp(A, 2)
    A(f"""
    s_lshl_b32 s34, s3, 2
    s_add_u32 s34, s34, {WS_FLAGA - WS_P}
    v_mov_b32 v5, s34
    v_mov_b32 v6, 1
    s_waitcnt vmcnt(0)
    s_mov_b64 exec, 1
    buffer_store_dword v6, v5, s[28:31], 0 offen sc1
    s_mov_b64 exec, -1
    s_cmp_ge_u32 s2, 144
    s_cbranch_scc1 L_k3_fin
    s_cmp_ge_u32 s2, 112
    s_cbranch_scc1 L_k3_dn_dma
    s_mov_b32 s69, s2
    """)
    A("""
    s_and_b32 s34, s69, 7
    s_mul_i32 s34, s34, 14
    s_lshr_b32 s35, s69, 3
    s_add_u32 s36, s34, s35
    s_lshl_b32 s36, s36, 5
    v_lshrrev_b32 v5, 1, v1
    s_lshl_b32 s34, s33, 6
    v_add_u32 v5, s34, v5
    s_movk_i32 s35, 3584
    v_mul_lo_u32 v5, v5, s35
    v_and_b32 v6, 1, v1
    v_lshl_add_u32 v5, v6, 4, v5
    v_add_u32 v5, s36, v5
    s_lshl_b32 s37, s33, 11
    """)
    srd(A, 60, 42, 512 * 1792 * 2)
    srd(A, 64, 44, 512 * 1792 * 2)
    for mat in range(2):
        for i in range(2):
            A(f"s_add_u32 s38, s37, {mat * 16384 + i * 1024}")
            A("s_mov_b32 m0, s38")
            A(f"s_mov_b32 s39, {i * 32 * 3584}")
            A(f"buffer_load_dwordx4 v5, {sr(60 + mat * 4, 4)}, s39 offen lds")
    A("s_branch L_k3_poll")
    A.label("L_k3_dn_dma")
    A("""
    s_sub_u32 s34, s2, 112
    s_and_b32 s35, s34, 7
    s_lshl_b32 s35, s35, 2
    s_lshr_b32 s34, s34, 3
    s_add_u32 s36, s35, s34
    s_lshl_b32 s36, s36, 5
    s_mul_i32 s34, s33, 224
    v_lshrrev_b32 v5, 1, v1
    v_add_u32 v5, s34, v5
    v_lshlrev_b32 v5, 10, v5
    v_and_b32 v6, 1, v1
    v_lshl_add_u32 v5, v6, 4, v5
    v_add_u32 v5, s36, v5
    s_mul_i32 s37, s33, 7*1024
    """)
    srd(A, 60, 46, 1792 * 512 * 2)
    for i in range(7):
        A(f"s_add_u32 s38, s37, {i * 1024}")
        A("s_mov_b32 m0, s38")
        A(f"s_mov_b32 s39, {i * 32 * 1024}")
        A("buffer_load_dwordx4 v5, s[60:63], s39 offen lds")
    A.label("L_k3_poll")
    A(f"""
    v_lshlrev_b32 v6, 5, v0
    v_add_u32 v6, {WS_REC - WS_P}, v6
    """)
    stamp(A, 7)
    A(f"s_sleep {SLEEP0}")
    A.label("L_k3_poll_loop")
    A("""
    buffer_load_dwordx4 v[8:11], v6, s[28:31], 0 offen sc1
    buffer_load_dwordx4 v[12:15], v6, s[28:31], 0 offen offset:16 sc1
    s_waitcnt vmcnt(0)
    v_min_u32 v7, v8, v10
    v_min3_u32 v7, v7, v12, v14
    v_cmp_eq_u32 vcc, 0, v7
    s_cbranch_vccz L_k3_poll_done
    s_sleep 8
    s_branch L_k3_poll_loop
    """)
    A.label("L_k3_poll_done")
    stamp(A, 3)
    CAND = 57344 + 4096
    topk_rounds(A, [8, 10, 12, 14], [16, 17, 18, 19], list(range(48, 56)), 4, [56, 57, 58, 59, 68])
    A("v_mov_b32 v7, 0")
    for c in range(8):
        A(f"v_writelane_b32 v7, s{48 + c}, {c}")
    A(f"""
    s_lshl_b32 s38, s33, 5
    s_add_u32 s38, s38, {CAND}
    v_lshlrev_b32 v16, 2, v1
    v_add_u32 v17, s38, v16
    s_mov_b64 exec, 0xff
    ds_write_b32 v17, v7
    s_mov_b64 exec, -1
    s_waitcnt lgkmcnt(0)
    s_barrier
    v_add_u32 v16, {CAND}, v16
    ds_read_b32 v8, v16
    s_waitcnt lgkmcnt(0)
    """)
    topk_rounds(A, [8], [16], list(range(48, 56)), 4, [56, 57, 58, 59, 68])
    stamp(A, 4)
    A("""
    s_cmp_ge_u32 s2, 112
    s_cbranch_scc1 L_k3_dn
    """)
    XS = 32768
    A("v_mov_b32 v7, 0")
    for c in range(8):
        A(f"v_writelane_b32 v7, s{48 + c}, {c}")
    A(f"""
    s_nop 0
    v_readlane_b32 s38, v7, s33
    s_and_b32 s38, s38, 0x7ff
    s_sub_u32 s38, 0x7ff, s38
    s_lshl_b32 s39, s38, 3
    s_add_u32 s39, s39, {WS_REC - WS_P}
    s_lshl_b32 s38, s38, 10
    v_add_u32 v4, s38, v3
    v_mov_b32 v5, s39
    buffer_load_dwordx4 v[8:11], v4, s[28:31], 0 offen
    buffer_load_dwordx4 v[12:15], v4, s[28:31], s32 offen
    buffer_load_dwordx4 v[16:19], v4, s[16:19], 0 offen
    buffer_load_dwordx2 v[20:21], v5, s[28:31], 0 offen sc1
    s_mul_i32 s38, s33, 1040
    s_add_u32 s38, s38, {XS}
    v_add_u32 v22, s38, v3
    s_waitcnt vmcnt(2)
    """)
    h_from_pqx(A, 8, 12, 16, 24, 32)
    A("s_waitcnt vmcnt(1)")
    h_add_x(A, 8, 16, 24, 32)
    A("""
    s_waitcnt vmcnt(0)
    v_lshlrev_b32 v5, 16, v21
    v_and_b32 v6, 0xffff0000, v21
    v_rcp_f32 v6, v6
    """)
    for j in range(8):
        A(f"v_sub_f32 v{32 + j}, v{24 + j}, v5")
    pack8(A, 12, 32)
    unpack8(A, 32, 12)
    for j in range(8):
        A(f"v_mul_f32 v{32 + j}, v{32 + j}, v6")
    pack8(A, 12, 32)
    A(f"""
    ds_write_b128 v22, v[12:15]
    v_and_b32 v8, 7, v1
    s_movk_i32 s38, 1040
    v_mul_lo_u32 v8, v8, s38
    v_lshrrev_b32 v9, 4, v1
    v_lshl_add_u32 v8, v9, 3, v8
    s_lshl_b32 s38, s33, 7
    s_add_u32 s38, s38, {XS}
    v_add_u32 v8, s38, v8
    v_lshlrev_b32 v10, 3, v1
    v_add_u32 v10, s37, v10
    s_waitcnt lgkmcnt(0)
    s_barrier
    """)
    stamp(A, 5)
    AF = 32
    BF = 48
    for c in range(2):
        A(f"ds_read_b64 {vr(AF + c * 4, 2)}, v8 offset:{c * 64}")
        A(f"ds_read_b64 {vr(AF + c * 4 + 2, 2)}, v8 offset:{c * 64 + 32}")
    for mat in range(2):
        for c in range(2):
            b = BF + (mat * 2 + c) * 4
            A(f"ds_read_b64_tr_b16 {vr(b, 2)}, v10 offset:{mat * 16384 + c * 1024}")
            A(f"ds_read_b64_tr_b16 {vr(b + 2, 2)}, v10 offset:{mat * 16384 + c * 1024 + 512}")
    A("s_waitcnt lgkmcnt(0)")
    for c in range(2):
        for mat in range(2):
            acc = vr(80 + mat * 4, 4)
            cc = "0" if c == 0 else acc
            A(f"v_mfma_f32_16x16x32_bf16 {acc}, {vr(AF + c * 4, 4)}, {vr(BF + (mat * 2 + c) * 4, 4)}, {cc}")
    REDU = 41472
    A(f"""
    s_lshl_b32 s38, s33, 10
    s_add_u32 s38, s38, {REDU}
    v_add_u32 v12, s38, v3
    s_nop 7
    s_mov_b64 exec, 0xffffffff
    ds_write_b128 v12, v[80:83]
    ds_write_b128 v12, v[84:87] offset:512
    s_mov_b64 exec, -1
    s_waitcnt lgkmcnt(0)
    s_barrier
    s_cmp_lg_u32 s33, 0
    s_cbranch_scc1 L_k3_fin
    s_mov_b64 exec, 0xffffffff
    """)
    for w in range(8):
        for mat in range(2):
            A(f"ds_read_b128 {vr(32 + (w * 2 + mat) * 4, 4)}, v3 offset:{REDU + w * 1024 + mat * 512}")
    A("s_waitcnt lgkmcnt(0)")
    for mat in range(2):
        for r in range(4):
            d = 32 + mat * 4 + r
            for w in (1, 3, 5, 7):
                A(f"v_add_f32 v{d + (w - 1) * 8}, v{d + (w - 1) * 8}, v{d + w * 8}")
            A(f"v_add_f32 v{d}, v{d}, v{d + 16}")
            A(f"v_add_f32 v{d + 32}, v{d + 32}, v{d + 48}")
            A(f"v_add_f32 v{d}, v{d}, v{d + 32}")
            bf16_round(A, d)
    for r in range(4):
        g = 32 + r
        u = 36 + r
        t = 40 + r
        A(f"v_mul_f32 v{t}, 0xbfb8aa3b, v{g}")
        A(f"v_exp_f32 v{t}, v{t}")
        A("s_nop 0")
        A(f"v_add_f32 v{t}, 1.0, v{t}")
        A(f"v_rcp_f32 v{t}, v{t}")
        A("s_nop 0")
        A(f"v_mul_f32 v{g}, v{g}, v{t}")
        bf16_round(A, g)
        A(f"v_mul_f32 v{g}, v{g}, v{u}")
        A(f"v_cvt_pk_bf16_f32 v{g}, v{g}, v{g}")
        A(f"v_and_b32 v{g}, 0xffff, v{g}")
        A(f"v_min_u32 v{g}, 0xfffe, v{g}")
    A(f"""
    v_lshrrev_b32 v9, 4, v1
    s_movk_i32 s38, 3584*4
    v_mul_lo_u32 v9, v9, s38
    v_and_b32 v10, 15, v1
    v_lshl_add_u32 v9, v10, 1, v9
    s_add_u32 s38, s36, {WS_ACT - WS_P}
    v_add_u32 v9, s38, v9
    """)
    for r in range(4):
        A(f"s_mov_b32 s39, {r * 3584}")
        A(f"buffer_store_short v{32 + r}, v9, s[28:31], s39 offen sc1")
    A("s_branch L_k3_fin")
    A.label("L_k3_dn")
    ACTL = 0
    REDD = 57344
    G = 96
    A("""
    v_mov_b32 v16, 0
    v_mov_b32 v17, 0
    v_mov_b32 v18, 0
    v_mov_b32 v19, 0
    s_cmp_lg_u32 s33, 0
    s_cbranch_scc1 L_k3_dn_nog
    v_cmp_lt_u32 vcc, 15, v1
    v_and_b32 v10, 15, v1
    v_lshlrev_b32 v10, 1, v10
    v_add_u32 v10, s36, v10
    """)
    for r in range(4):
        A(f"v_mov_b32 v{12 + r}, s{48 + r}")
        A(f"v_mov_b32 v24, s{52 + r}")
        A(f"v_cndmask_b32 v{12 + r}, v{12 + r}, v24, vcc")
        A(f"v_and_b32 v{16 + r}, 0x7ff, v{12 + r}")
        A(f"v_sub_u32 v{16 + r}, 0x7ff, v{16 + r}")
        A(f"v_lshlrev_b32 v{20 + r}, 3, v{16 + r}")
        A(f"v_add_u32 v{20 + r}, {WS_REC - WS_P + 4}, v{20 + r}")
        A(f"v_lshl_add_u32 v{16 + r}, v{16 + r}, 10, v10")
    A("s_mov_b64 exec, 0xffffffff")
    for r in range(4):
        A(f"buffer_load_ushort v{G + r}, v{16 + r}, s[28:31], 0 offen")
        A(f"buffer_load_ushort v{G + 4 + r}, v{16 + r}, s[28:31], s32 offen")
        A(f"buffer_load_dword v{G + 8 + r}, v{20 + r}, s[28:31], 0 offen sc1")
        A(f"buffer_load_ushort v{G + 12 + r}, v{16 + r}, s[16:19], 0 offen")
    A("s_mov_b64 exec, -1")
    A.label("L_k3_dn_nog")
    A("""
    s_cmp_lg_u32 s33, 0
    s_cbranch_scc1 L_k3_fl_wait
    v_mov_b32 v6, 0
    """)
    for c in range(8):
        A(f"v_writelane_b32 v6, s{48 + c}, {c}")
    A(f"""
    v_mov_b32 v7, s48
    v_cmp_gt_u32 vcc, 8, v1
    s_nop 1
    v_cndmask_b32 v6, v7, v6, vcc
    v_and_b32 v6, 0x7ff, v6
    v_sub_u32 v6, 0x7ff, v6
    v_lshlrev_b32 v6, 2, v6
    v_add_u32 v6, {WS_FLAGA - WS_P}, v6
    """)
    A.label("L_k3_fl_loop")
    A("""
    buffer_load_dword v8, v6, s[28:31], 0 offen sc1
    s_waitcnt vmcnt(0)
    v_cmp_eq_u32 vcc, 0, v8
    s_cbranch_vccz L_k3_fl_wait
    s_sleep 8
    s_branch L_k3_fl_loop
    """)
    A.label("L_k3_fl_wait")
    A("""
    v_lshlrev_b32 v7, 3, v1
    v_add_u32 v7, s37, v7
    s_waitcnt vmcnt(0)
    """)
    for c in range(7):
        b = 64 + c * 4
        A(f"ds_read_b64_tr_b16 {vr(b, 2)}, v7 offset:{c * 1024}")
        A(f"ds_read_b64_tr_b16 {vr(b + 2, 2)}, v7 offset:{c * 1024 + 512}")
    A("s_waitcnt lgkmcnt(0)")
    A("s_barrier")
    A(f"""
    s_mul_i32 s38, s33, 3584
    s_add_u32 s38, s38, {WS_ACT - WS_P}
    v_add_u32 v5, s38, v3
    s_mul_i32 s38, s33, 3600
    s_add_u32 s38, s38, {ACTL}
    v_add_u32 v6, s38, v3
    v_mov_b32 v44, 0
    v_mov_b32 v45, 0
    v_mov_b32 v46, 0
    v_mov_b32 v47, 0
    s_sleep {SLEEP1}
    """)
    A.label("L_k3_act_loop")
    for i in range(3):
        A(f"buffer_load_dwordx4 {vr(32 + i * 4, 4)}, v5, s[28:31], 0 offen offset:{i * 1024} sc1")
    A("""
    s_mov_b64 exec, 0xffffffff
    buffer_load_dwordx4 v[44:47], v5, s[28:31], 0 offen offset:3072 sc1
    s_mov_b64 exec, -1
    s_waitcnt vmcnt(0)
    v_pk_max_u16 v8, v32, v33
    """)
    for i in range(34, 48):
        A(f"v_pk_max_u16 v8, v8, v{i}")
    A("""
    v_lshrrev_b32 v9, 16, v8
    v_and_b32 v8, 0xffff, v8
    v_max_u32 v8, v8, v9
    v_cmp_eq_u32 vcc, 0xffff, v8
    s_cbranch_vccz L_k3_act_done
    s_sleep 4
    s_branch L_k3_act_loop
    """)
    A.label("L_k3_act_done")
    stamp(A, 5)
    for i in range(3):
        A(f"ds_write_b128 v6, {vr(32 + i * 4, 4)} offset:{i * 1024}")
    A(f"""
    s_mov_b64 exec, 0xffffffff
    ds_write_b128 v6, v[44:47] offset:3072
    s_mov_b64 exec, -1
    v_lshlrev_b32 v7, 3, v1
    v_add_u32 v7, s37, v7
    v_and_b32 v5, 7, v1
    s_movk_i32 s38, 3600
    v_mul_lo_u32 v5, v5, s38
    v_lshrrev_b32 v6, 4, v1
    v_lshl_add_u32 v5, v6, 3, v5
    s_mul_i32 s38, s33, 448
    s_add_u32 s38, s38, {ACTL}
    v_add_u32 v5, s38, v5
    s_waitcnt lgkmcnt(0)
    s_barrier
    """)
    AF = 32
    BF = 64
    for c in range(7):
        A(f"ds_read_b64 {vr(AF + c * 4, 2)}, v5 offset:{c * 64}")
        A(f"ds_read_b64 {vr(AF + c * 4 + 2, 2)}, v5 offset:{c * 64 + 32}")
    A("s_waitcnt lgkmcnt(0)")
    for c in range(7):
        acc = vr(24, 4)
        cc = "0" if c == 0 else acc
        A(f"v_mfma_f32_16x16x32_bf16 {acc}, {vr(AF + c * 4, 4)}, {vr(BF + c * 4, 4)}, {cc}")
    A(f"""
    s_lshl_b32 s38, s33, 9
    s_add_u32 s38, s38, {REDD}
    v_add_u32 v8, s38, v3
    s_nop 7
    s_mov_b64 exec, 0xffffffff
    ds_write_b128 v8, v[24:27]
    s_mov_b64 exec, -1
    s_waitcnt lgkmcnt(0)
    s_barrier
    s_cmp_lg_u32 s33, 0
    s_cbranch_scc1 L_k3_fin
    s_mov_b64 exec, 0xffffffff
    """)
    A(f"v_add_u32 v8, {REDD}, v3")
    for w in range(8):
        A(f"ds_read_b128 {vr(32 + w * 4, 4)}, v8 offset:{w * 512}")
    A("s_waitcnt vmcnt(0) lgkmcnt(0)")
    for r in range(4):
        d = 32 + r
        for w in (1, 3, 5, 7):
            A(f"v_add_f32 v{d + (w - 1) * 4}, v{d + (w - 1) * 4}, v{d + w * 4}")
        A(f"v_add_f32 v{d}, v{d}, v{d + 8}")
        A(f"v_add_f32 v{d + 16}, v{d + 16}, v{d + 24}")
        A(f"v_add_f32 v{d}, v{d}, v{d + 16}")
    for r in range(4):
        d = 32 + r
        bf16_round(A, d)
        k = 12 + r
        t = 64
        A(f"v_lshrrev_b32 v{t}, 16, v{k}")
        A(f"v_and_b32 v{t + 1}, 0x7fff, v{t}")
        A(f"v_xor_b32 v{t + 2}, 0xffff, v{t}")
        A(f"v_cmp_lt_u32 vcc, 0x7fff, v{t}")
        A("s_nop 1")
        A(f"v_cndmask_b32 v{t}, v{t + 2}, v{t + 1}, vcc")
        A(f"v_lshlrev_b32 v{t}, 16, v{t}")
        A(f"v_mul_f32 v{t}, 0xbfb8aa3b, v{t}")
        A(f"v_exp_f32 v{t}, v{t}")
        A("s_nop 0")
        A(f"v_add_f32 v{t}, 1.0, v{t}")
        A(f"v_rcp_f32 v{t}, v{t}")
        A("s_nop 0")
        bf16_round(A, t)
        A(f"v_mul_f32 v{d}, v{d}, v{t}")
        bf16_round(A, d)
        p, q, st, x = G + r, G + 4 + r, G + 8 + r, G + 12 + r
        for z in (p, q, x):
            A(f"v_lshlrev_b32 v{z}, 16, v{z}")
        A(f"v_sub_f32 v{p}, v{p}, v{q}")
        bf16_round(A, p)
        A(f"v_add_f32 v{p}, v{p}, v{x}")
        bf16_round(A, p)
        A(f"v_lshlrev_b32 v{q}, 16, v{st}")
        A(f"v_and_b32 v{st}, 0xffff0000, v{st}")
        A(f"v_rcp_f32 v{st}, v{st}")
        A(f"v_sub_f32 v{q}, v{p}, v{q}")
        bf16_round(A, q)
        A(f"v_mul_f32 v{q}, v{q}, v{st}")
        bf16_round(A, q)
        A(f"v_add_f32 v{q}, v{q}, v{d}")
        bf16_round(A, q)
        A(f"v_add_f32 v{p}, v{p}, v{q}")
        A(f"v_cvt_pk_bf16_f32 v{p}, v{p}, v{p}")
        A(f"buffer_store_short v{p}, v{16 + r}, s[24:27], 0 offen sc1")
    A.label("L_k3_fin")
    A("s_waitcnt vmcnt(0)") if STAMPS else None
    stamp(A, 6)
    stamp_dump(A, 9, 2, 12)
    A.label("L_k3_end")
    A("s_endpgm")
    return name, kd(name, 112), (256, 512, K3LDS or (CAND + 256))


HEADER = """; Generated by dev/gen.py -- 3-launch list:
"""


def main():
    global STAMPS, PF_SCHED
    if len(sys.argv) > 2 and sys.argv[2] == "stamps":
        STAMPS = True
    global SLEEP0
    if len(sys.argv) > 3:
        SLEEP0 = int(sys.argv[3])
    global SLEEP1
    if len(sys.argv) > 4:
        SLEEP1 = int(sys.argv[4])
    A = Asm()
    gens = [gen_k1, gen_k2, gen_k3]
    kds = []
    launches = []
    for g in gens:
        name, kdtext, (grid, block, lds) = g(A)
        kds.append(kdtext)
        launches.append(f"; @launch kernel={name} grid=({grid},1,1) block=({block},1,1) lds={lds}")
    out = HEADER + "\n".join(launches) + "\n"
    out += '.amdgcn_target "amdgcn-amd-amdhsa--gfx950"\n.text\n'
    out += A.text()
    out += '.section .rodata,"a"\n' + "".join(kds)
    path = sys.argv[1] if len(sys.argv) > 1 else f"cdna_kernels/{NAME}.s"
    open(path, "w").write(out)


if __name__ == "__main__":
    main()
```

```python
import sys

NAME = "sequential_preLN__spectral_fnet__moe_arch_mod__prompt"

WS_BF = 0
WS_P = 4 << 20
WS_Q = 6 << 20
WS_HN = 8 << 20
WS_KEYS = 10 << 20
WS_ACT = (10 << 20) + 65536
WS_SEL = (10 << 20) + 131072
WS_REC = (10 << 20) + 262144
WS_FLAG = WS_REC + 16384
WS_FLAGA = WS_REC + 17408
WS_TOTAL = 11 << 20


class Asm:
    def __init__(self):
        self.lines = []

    def __call__(self, s):
        for ln in s.strip("\n").split("\n"):
            ln = ln.strip()
            if ln:
                self.lines.append("    " + ln)

    def label(self, s):
        self.lines.append(s + ":")

    def raw(self, s):
        self.lines.append(s)

    def text(self):
        return "\n".join(self.lines) + "\n"


def vr(a, n):
    return f"v[{a}:{a + n - 1}]"


def sr(a, n):
    return f"s[{a}:{a + n - 1}]"


def srd(A, d, base, nbytes):
    A(f"s_mov_b32 s{d}, s{base}")
    A(f"s_and_b32 s{d + 1}, s{base + 1}, 0xffff")
    A(f"s_mov_b32 s{d + 2}, {nbytes:#x}")
    A(f"s_mov_b32 s{d + 3}, 0x00020000")


def srd_off(A, d, base, off, nbytes):
    A(f"s_add_u32 s{d}, s{base}, {off:#x}")
    A(f"s_addc_u32 s{d + 1}, s{base + 1}, 0")
    A(f"s_and_b32 s{d + 1}, s{d + 1}, 0xffff")
    A(f"s_mov_b32 s{d + 2}, {nbytes:#x}")
    A(f"s_mov_b32 s{d + 3}, 0x00020000")


DPP = "row_mask:0xf bank_mask:0xf"


def row_reduce(A, op, v):
    A("s_nop 1")
    A(f"{op}_dpp v{v}, v{v}, v{v} quad_perm:[1,0,3,2] {DPP}")
    A("s_nop 1")
    A(f"{op}_dpp v{v}, v{v}, v{v} quad_perm:[2,3,0,1] {DPP}")
    A("s_nop 1")
    A(f"{op}_dpp v{v}, v{v}, v{v} row_half_mirror {DPP}")
    A("s_nop 1")
    A(f"{op}_dpp v{v}, v{v}, v{v} row_mirror {DPP}")


def cross_rows_sum(A, v, tmp):
    A(f"v_mov_b32 v{tmp}, v{v}")
    A("s_nop 1")
    A(f"v_permlane16_swap_b32 v{v}, v{tmp}")
    A("s_nop 1")
    A(f"v_add_f32 v{v}, v{v}, v{tmp}")
    A(f"v_mov_b32 v{tmp}, v{v}")
    A("s_nop 1")
    A(f"v_permlane32_swap_b32 v{v}, v{tmp}")
    A("s_nop 1")
    A(f"v_add_f32 v{v}, v{v}, v{tmp}")


def wave_sum(A, v, tmp):
    row_reduce(A, "v_add_f32", v)
    cross_rows_sum(A, v, tmp)


def bf16_round(A, v):
    A(f"v_cvt_pk_bf16_f32 v{v}, v{v}, v{v}")
    A(f"v_lshlrev_b32 v{v}, 16, v{v}")


STAMPS = False
SLEEP0 = 32
K1_WTOUCH = 0
K2PRE = 4
K2POS = [1, 3, 6, 8, 11, 13]
K1_EARLY = 4
ROT = 4
K3LDS = 0
SLEEP1 = 50
PF_SCHED = [3, 3, 4, 4, 4, 9, 9, 9]
WS_STAMP = 12 << 20


def stamp(A, i):
    if STAMPS:
        A(f"s_memtime s[90:91]")
        A("s_waitcnt lgkmcnt(0)")
        A(f"s_mov_b32 s{76 + i}, s90")


def stamp_dump(A, n, kidx, ws_lo):
    if STAMPS:
        A("s_mov_b64 exec, -1")
        A("v_mov_b32 v1, 0")
        for i in range(n):
            A(f"s_sub_u32 s91, s{76 + i}, s76")
            A(f"v_writelane_b32 v1, s91, {i}")
        A(f"s_add_u32 s92, s{ws_lo}, {WS_STAMP + kidx * (1 << 20):#x}")
        A(f"s_addc_u32 s93, s{ws_lo + 1}, 0")
        A("s_and_b32 s93, s93, 0xffff")
        A("s_mov_b32 s94, 0x100000")
        A("s_mov_b32 s95, 0x00020000")
        A("v_lshlrev_b32 v2, 2, v0")
        A("s_lshl_b32 s91, s2, 12")
        A("v_add_u32 v2, s91, v2")
        A("buffer_store_dword v1, v2, s[92:95], 0 offen")


def kernel_header(A, name):
    A.raw(f".globl {name}")
    A.raw(".p2align 8")
    A.raw(f".type {name},@function")
    A.label(name)


def kd(name, vgpr, sgpr=96):
    acc = (vgpr + 3) // 4 * 4
    return f""".p2align 6
.amdhsa_kernel {name}
  .amdhsa_next_free_vgpr {vgpr}
  .amdhsa_next_free_sgpr {sgpr}
  .amdhsa_accum_offset {acc}
  .amdhsa_group_segment_fixed_size 0
  .amdhsa_kernarg_size 104
  .amdhsa_user_sgpr_count 2
  .amdhsa_user_sgpr_kernarg_segment_ptr 1
  .amdhsa_system_sgpr_workgroup_id_x 1
  .amdhsa_float_denorm_mode_32 3
.end_amdhsa_kernel
"""


def gen_k1(A):
    name = "k1_lngemm_kernel"
    kernel_header(A, name)
    A("""
    s_cmp_ge_u32 s2, 256
    s_cbranch_scc1 L_k1_end
    """)
    stamp(A, 0)
    A("""
    s_load_dwordx2 s[4:5], s[0:1], 0
    s_load_dwordx8 s[44:51], s[0:1], 8
    s_load_dwordx2 s[12:13], s[0:1], 96
    s_and_b32 s27, s2, 7
    s_lshr_b32 s26, s2, 3
    s_lshr_b32 s30, s26, 3
    s_lshl_b32 s28, s27, 2
    s_add_u32 s28, s28, s30
    s_and_b32 s29, s26, 7
    v_and_b32 v1, 63, v0
    v_lshrrev_b32 v2, 6, v0
    s_nop 0
    v_readfirstlane_b32 s30, v2
    s_and_b32 s32, s30, 1
    s_lshr_b32 s31, s30, 1
    """)
    WL = 32768
    A("""
    v_and_b32 v8, 15, v1
    v_lshrrev_b32 v9, 4, v1
    v_lshlrev_b32 v10, 4, v1
    """)
    A("""
    s_lshl_b32 s33, s28, 6
    s_lshl_b32 s34, s30, 3
    s_add_u32 s33, s33, s34
    v_add_u32 v2, s33, v9
    v_lshlrev_b32 v2, 10, v2
    v_lshl_add_u32 v2, v8, 4, v2
    """)
    A("""
    s_lshl_b32 s33, s32, 7
    v_xor_b32 v4, s33, v10
    s_and_b32 s33, s29, 3
    s_lshl_b32 s33, s33, 7
    s_lshl_b32 s34, s30, 4
    s_add_u32 s33, s33, s34
    s_lshl_b32 s33, s33, 10
    s_lshl_b32 s34, s30, 14
    """)
    A(f"s_add_u32 s34, s34, {WL}")
    A("""
    s_lshr_b32 s35, s27, 1
    s_lshl_b32 s35, s35, 21
    s_lshl_b32 s36, s26, 16
    s_add_u32 s35, s35, s36
    s_lshl_b32 s36, s30, 13
    s_add_u32 s35, s35, s36
    v_lshlrev_b32 v5, 7, v1
    v_add_u32 v5, s35, v5
    """)
    A("""
    s_and_b32 s37, s29, 3
    s_lshl_b32 s37, s37, 1
    s_lshr_b32 s38, s30, 2
    s_add_u32 s37, s37, s38
    s_lshr_b32 s36, s29, 2
    s_lshl_b32 s35, s36, 21
    s_lshl_b32 s37, s37, 18
    s_add_u32 s35, s35, s37
    s_lshl_b32 s37, s28, 13
    s_add_u32 s35, s35, s37
    s_and_b32 s37, s31, 1
    s_lshl_b32 s37, s37, 12
    s_add_u32 s35, s35, s37
    s_lshl_b32 s37, s32, 10
    s_add_u32 s35, s35, s37
    v_add_u32 v3, s35, v10
    s_waitcnt lgkmcnt(0)
    """)
    srd(A, 16, 4, 2048 * 512 * 2)
    A("""
    s_cmp_eq_u32 s36, 0
    s_cselect_b32 s20, s48, s50
    s_cselect_b32 s21, s49, s51
    s_and_b32 s21, s21, 0xffff
    s_mov_b32 s22, 0x80000
    s_mov_b32 s23, 0x00020000
    s_and_b32 s37, s27, 1
    s_cmp_eq_u32 s37, 0
    s_cselect_b32 s52, s44, s46
    s_cselect_b32 s53, s45, s47
    s_and_b32 s53, s53, 0xffff
    s_mov_b32 s54, 0x800000
    s_mov_b32 s55, 0x00020000
    """)
    srd_off(A, 56, 12, WS_BF, 4 << 20)
    XB = 64
    for g in range(2):
        A(f"s_mov_b32 s38, {g * 4096}")
        for j in range(4):
            A(f"buffer_load_dwordx4 {vr(XB + (g * 4 + j) * 4, 4)}, v2, s[16:19], s38 offen offset:{j * 256}")
    if K1_WTOUCH:
        A("""
        s_cmp_ge_u32 s30, 4
        s_cbranch_scc1 L_k1_nwt
        s_and_b32 s40, s29, 3
        s_lshl_b32 s40, s40, 7
        s_and_b32 s41, s28, 3
        s_lshl_b32 s41, s41, 5
        s_add_u32 s40, s40, s41
        s_lshl_b32 s41, s30, 3
        s_add_u32 s40, s40, s41
        s_lshl_b32 s40, s40, 10
        v_lshlrev_b32 v7, 7, v1
        buffer_load_dword v6, v7, s[20:23], s40 offen
        """)
        A.label("L_k1_nwt")
    dma_groups = []
    for r4 in range(4):
        for rr in range(4):
            r = r4 * 4 + rr
            f = ((r >> 3) * 4 + (r & 3)) * 16
            g = []
            if rr == 0:
                g += [f"s_add_u32 s43, s34, {r4 * 4096}", "s_mov_b32 m0, s43", f"s_add_u32 s41, s33, {r4 * 4096}"]
            g += [f"v_xor_b32 v7, {f:#x}, v4",
                  f"buffer_load_dwordx4 v7, s[20:23], s41 offen offset:{rr * 1024} lds"]
            dma_groups.append(g)
    NEARLY = K1_EARLY
    for g in dma_groups[:NEARLY]:
        for ins in g:
            A(ins)
    dma_rest = dma_groups[NEARLY:]

    def dma_next():
        if dma_rest:
            for ins in dma_rest.pop(0):
                A(ins)
    pfn = [0]
    sched = PF_SCHED

    def pf(point):
        waves = [w for w in range(8) if sched[w] == point]
        if not waves:
            return
        n = pfn[0]
        pfn[0] += 1
        mask = sum(1 << w for w in waves)
        A(f"s_mov_b32 s42, {mask}")
        A("s_bitcmp0_b32 s42, s30")
        A(f"s_cbranch_scc1 L_k1_pf{n}")
        A("buffer_load_dword v6, v5, s[52:55], 0 offen")
        A.label(f"L_k1_pf{n}")

    pf(0)
    stamp(A, 1)
    A("""
    s_and_b32 s40, s30, 3
    s_lshl_b32 s40, s40, 2
    v_add_u32 v14, s40, v9
    v_xor_b32 v14, v14, v8
    v_lshlrev_b32 v14, 4, v14
    s_lshl_b32 s40, s30, 3
    v_add_u32 v15, s40, v9
    v_lshl_add_u32 v16, v15, 9, v14
    v_add_u32 v17, 2048, v16
    """)
    A(f"""
    v_lshrrev_b32 v14, 2, v8
    v_lshlrev_b32 v14, 3, v14
    v_and_b32 v15, 3, v8
    v_add_u32 v14, v14, v15
    s_lshl_b32 s40, s32, 5
    v_add_u32 v15, s40, v14
    v_lshlrev_b32 v15, 9, v15
    s_lshl_b32 s40, s31, 5
    v_add_u32 v14, s40, v14
    v_lshlrev_b32 v14, 10, v14
    v_add_u32 v14, {WL}, v14
    """)
    for k3 in range(4):
        A(f"v_add_u32 v18, {k3 * 4}, v9")
        A("v_xor_b32 v18, v18, v8")
        A(f"v_lshl_add_u32 v{20 + k3}, v18, 4, v15")
        A(f"v_lshl_add_u32 v{24 + k3}, v18, 4, v14")
    A("v_mov_b32 v19, 0x3f803f80")
    if K1_WTOUCH:
        A(f"s_waitcnt vmcnt({NEARLY + 1})")
        A("s_cmp_lt_u32 s30, 4")
        A("s_cbranch_scc1 L_k1_xok")
    A(f"s_waitcnt vmcnt({NEARLY})")
    if K1_WTOUCH:
        A.label("L_k1_xok")
    stamp(A, 2)
    pf(1)
    T = 96
    NG = 2
    for g in range(NG):
        sm = 28 + g
        A(f"v_mov_b32 v{sm}, 0")
        for r in range(16):
            A(f"v_dot2_f32_bf16 v{sm}, v{XB + g * 16 + r}, v19, v{sm}")
            if r % 8 == 7:
                dma_next()
    A("s_nop 1")
    for g in range(NG):
        row_reduce(A, "v_add_f32", 28 + g)
    for g in range(NG):
        sm = 28 + g
        mb = 32 + g
        A(f"v_mul_f32 v{sm}, 0x3b000000, v{sm}")
        A(f"v_mov_b32 v{mb}, v{sm}")
        bf16_round(A, mb)
        A(f"v_sub_f32 v{sm}, v{sm}, v{mb}")
    for g in range(NG):
        q0 = T + 8 + g * 2
        A(f"v_mov_b32 v{q0}, 0")
        A(f"v_mov_b32 v{q0 + 1}, 0")
        for r in range(16):
            x = XB + g * 16 + r
            t = T + 16 + (r & 3) * 2
            A(f"v_lshlrev_b32 v{t}, 16, v{x}")
            A(f"v_and_b32 v{t + 1}, 0xffff0000, v{x}")
            A(f"v_sub_f32 v{t}, v{t}, v{32 + g}")
            A(f"v_sub_f32 v{t + 1}, v{t + 1}, v{32 + g}")
            A(f"v_fmac_f32 v{q0}, v{t}, v{t}")
            A(f"v_fmac_f32 v{q0 + 1}, v{t + 1}, v{t + 1}")
            A(f"v_cvt_pk_bf16_f32 v{x}, v{t}, v{t + 1}")
            if r % 3 == 2:
                dma_next()
        A(f"v_add_f32 v{36 + g}, v{q0}, v{q0 + 1}")
    while dma_rest:
        dma_next()
    pf(2)
    for g in range(NG):
        row_reduce(A, "v_add_f32", 36 + g)
    for g in range(NG):
        vv = 36 + g
        A(f"v_mul_f32 v{vv}, 0x3b000000, v{vv}")
        A(f"v_fma_f32 v{vv}, -v{28 + g}, v{28 + g}, v{vv}")
        A(f"v_max_f32 v{vv}, 0, v{vv}")
        bf16_round(A, vv)
        A(f"v_add_f32 v{vv}, 0x3727c5ac, v{vv}")
        bf16_round(A, vv)
        A(f"v_sqrt_f32 v{vv}, v{vv}")
        A("s_nop 0")
        bf16_round(A, vv)
        A(f"v_rcp_f32 v{T + g}, v{vv}")
    A("s_nop 0")
    for g in range(NG):
        for r in range(16):
            x = XB + g * 16 + r
            t = T + 16 + (r & 3) * 2
            A(f"v_lshlrev_b32 v{t}, 16, v{x}")
            A(f"v_and_b32 v{t + 1}, 0xffff0000, v{x}")
            A(f"v_mul_f32 v{t}, v{t}, v{T + g}")
            A(f"v_mul_f32 v{t + 1}, v{t + 1}, v{T + g}")
            A(f"v_cvt_pk_bf16_f32 v{x}, v{t}, v{t + 1}")
            if (r & 3) == 3 and (r >> 2) < 2:
                j = r >> 2
                A(f"ds_write_b128 v{16 + g}, {vr(XB + (g * 4 + j) * 4, 4)} offset:{j * 256}")
    pf(3)
    stamp(A, 3)
    ACC = 32
    FB = 96

    def rd_list(kc):
        fb = FB + (kc & 1) * 16
        kcl = kc & 7
        out = []
        for h in range(2):
            out.append(f"ds_read_b128 {vr(fb + h * 4, 4)}, v{20 + (kcl & 3)} offset:{h * 2048 + (kcl >> 2) * 256}")
        for i in range(2):
            out.append(f"ds_read_b128 {vr(fb + 8 + i * 4, 4)}, v{24 + (kc & 3)} offset:{i * 4096 + (kc >> 2) * 256}")
        return out

    A("""
    s_waitcnt vmcnt(1) lgkmcnt(0)
    """)
    A(f"s_mov_b32 s42, {sum(1 << w for w in range(8) if sched[w] <= 3)}")
    A("""
    s_bitcmp1_b32 s42, s30
    s_cbranch_scc1 L_k1_w1
    s_waitcnt vmcnt(0)
    """)
    A.label("L_k1_w1")
    A("s_barrier")
    stamp(A, 4)
    pf(4)
    for half in range(2):
        if half == 1:
            pf(6)
            A("s_barrier")
            for g in range(NG):
                for j in (2, 3):
                    A(f"ds_write_b128 v{16 + g}, {vr(XB + (g * 4 + j) * 4, 4)} offset:{(j - 2) * 256}")
            A("s_waitcnt lgkmcnt(0)")
            A("s_barrier")
        for ins in rd_list(half * 8):
            A(ins)
        for kcl in range(8):
            kc = half * 8 + kcl
            fb = FB + (kc & 1) * 16
            nxt = rd_list(kc + 1) if kcl < 7 else []
            for ins in nxt:
                A(ins)
            if kcl == 4:
                pf(5 + 2 * half)
            A(f"s_waitcnt lgkmcnt({len(nxt)})")
            for h in range(2):
                for ii in range(2):
                    acc = vr(ACC + (h * 2 + ii) * 4, 4)
                    a = vr(fb + h * 4, 4)
                    b = vr(fb + 8 + ii * 4, 4)
                    cc = "0" if kc == 0 else acc
                    A(f"v_mfma_f32_16x16x32_bf16 {acc}, {a}, {b}, {cc}")
    A("s_nop 7")
    A("s_nop 1")
    stamp(A, 5)
    for i in range(2):
        o = FB + i * 4
        t0 = ACC + (0 * 2 + i) * 4
        t1 = ACC + (1 * 2 + i) * 4
        A(f"v_cvt_pk_bf16_f32 v{o}, v{t0}, v{t0 + 1}")
        A(f"v_cvt_pk_bf16_f32 v{o + 1}, v{t0 + 2}, v{t0 + 3}")
        A(f"v_cvt_pk_bf16_f32 v{o + 2}, v{t1}, v{t1 + 1}")
        A(f"v_cvt_pk_bf16_f32 v{o + 3}, v{t1 + 2}, v{t1 + 3}")
        A(f"buffer_store_dwordx4 {vr(o, 4)}, v3, s[56:59], 0 offen offset:{i * 2048}")
    A("s_waitcnt vmcnt(0)") if STAMPS else None
    stamp(A, 6)
    stamp_dump(A, 7, 0, 12)
    A.label("L_k1_end")
    A("s_endpgm")
    return name, kd(name, 128), (256, 512, 163840)


def gen_k2(A, NS=6):
    name = "k2_gemm_kernel"
    kernel_header(A, name)
    A("""
    s_cmp_ge_u32 s2, 256
    s_cbranch_scc1 L_k2_end
    """)
    stamp(A, 0)
    A("""
    s_load_dwordx4 s[4:7], s[0:1], 8
    s_load_dwordx2 s[12:13], s[0:1], 96
    s_load_dwordx4 s[44:47], s[0:1], 56
    s_load_dwordx2 s[48:49], s[0:1], 72
    s_and_b32 s28, s2, 7
    s_lshr_b32 s29, s2, 3
    s_and_b32 s30, s28, 1
    s_lshr_b32 s31, s28, 1
    s_lshl_b32 s31, s31, 2
    s_lshr_b32 s32, s29, 3
    s_add_u32 s31, s31, s32
    s_and_b32 s32, s29, 7
    v_and_b32 v1, 63, v0
    v_lshrrev_b32 v2, 6, v0
    s_nop 0
    v_readfirstlane_b32 s33, v2
    """)
    SS = 24576
    A("""
    v_and_b32 v12, 15, v1
    v_lshrrev_b32 v13, 4, v1
    v_and_b32 v14, 7, v1
    v_lshrrev_b32 v15, 3, v1
    s_lshl_b32 s34, s31, 7
    s_lshl_b32 s35, s33, 5
    s_add_u32 s34, s34, s35
    v_add_u32 v2, s34, v15
    v_lshlrev_b32 v2, 12, v2
    v_xor_b32 v3, v14, v15
    v_lshl_add_u32 v8, v3, 4, v2
    """)
    for j in range(1, 4):
        A(f"v_add_u32 v{8 + j}, {j * 32768 - j * 1024:#x}, v8")
    A("""
    v_lshlrev_b32 v5, 4, v1
    s_lshl_b32 s35, s33, 11
    v_add_u32 v4, s35, v5
    """)
    A("""
    v_add_u32 v2, s34, v12
    v_lshlrev_b32 v6, 10, v2
    v_lshl_add_u32 v6, v13, 4, v6
    s_lshl_b32 s36, s30, 21
    s_lshl_b32 s37, s32, 7
    s_add_u32 s36, s36, s37
    v_add_u32 v6, s36, v6
    v_add_u32 v7, 0x4000, v6
    """)
    NH = (NS + 1) // 2
    A("""
    s_lshl_b32 s36, s33, 12
    v_lshlrev_b32 v2, 7, v12
    v_add_u32 v2, s36, v2
    v_xor_b32 v3, v13, v14
    v_lshl_add_u32 v16, v3, 4, v2
    v_xor_b32 v17, 64, v16
    v_add_u32 v18, 0x4000, v5
    """)
    for h in range(1, NH):
        for k in range(3):
            A(f"v_add_u32 v{16 + h * 3 + k}, {h * 2 * SS:#x}, v{16 + k}")
    A("""
    s_waitcnt lgkmcnt(0)
    s_cmp_eq_u32 s30, 0
    s_cselect_b32 s8, s4, s6
    s_cselect_b32 s9, s5, s7
    s_and_b32 s9, s9, 0xffff
    s_mov_b32 s10, 0x800000
    s_mov_b32 s11, 0x00020000
    """)
    A("""
    s_lshl_b32 s37, s30, 21
    s_lshl_b32 s38, s32, 18
    s_add_u32 s37, s37, s38
    s_add_u32 s16, s12, s37
    s_addc_u32 s17, s13, 0
    s_and_b32 s17, s17, 0xffff
    s_mov_b32 s18, 0x40000
    s_mov_b32 s19, 0x00020000
    s_add_u32 s37, s35, 16384
    """)
    srd_off(A, 20, 12, WS_P, 7 << 20)
    A(f"""
    s_cmp_ge_u32 s2, 53
    s_cbranch_scc1 L_k2_nz
    s_cmp_lg_u32 s33, 0
    s_cbranch_scc1 L_k2_nz
    s_lshl_b32 s38, s2, 10
    s_add_u32 s39, s38, {WS_ACT - WS_P - 25 * 1024}
    s_add_u32 s38, s38, {WS_REC - WS_P}
    s_cmp_lt_u32 s2, 25
    s_cselect_b32 s38, s38, s39
    s_cselect_b32 s39, 0, -1
    v_mov_b32 v32, s39
    v_mov_b32 v33, s39
    v_mov_b32 v34, s39
    v_mov_b32 v35, s39
    buffer_store_dwordx4 v[32:35], v5, s[20:23], s38 offen
    s_waitcnt vmcnt(0)
    """)
    A.label("L_k2_nz")
    A("""
    s_lshl_b32 s50, s29, 2
    s_add_u32 s50, s50, s33
    s_cmp_lt_u32 s50, 40
    s_cselect_b32 s52, s44, s46
    s_cselect_b32 s53, s45, s47
    s_cselect_b32 s51, 0, 40
    s_cmp_lt_u32 s50, 80
    s_cselect_b32 s52, s52, s48
    s_cselect_b32 s53, s53, s49
    s_cselect_b32 s51, s51, 80
    s_and_b32 s53, s53, 0xffff
    s_mov_b32 s54, 0x1c0000
    s_mov_b32 s55, 0x00020000
    s_sub_u32 s51, s50, s51
    s_lshl_b32 s51, s51, 6
    v_add_u32 v30, s51, v1
    s_mov_b32 s51, 52429
    v_mul_lo_u32 v31, v30, s51
    v_lshrrev_b32 v31, 18, v31
    v_mul_u32_u24 v29, 5, v31
    v_sub_u32 v29, v30, v29
    s_movk_i32 s51, 3584
    v_mul_lo_u32 v31, v31, s51
    v_lshl_add_u32 v31, v29, 7, v31
    s_mul_i32 s51, s28, 448
    s_and_b32 s51, s51, 0xffffff80
    v_add_u32 v31, s51, v31
    v_lshlrev_b32 v30, 10, v30
    s_lshl_b32 s51, s28, 7
    v_add_u32 v30, s51, v30
    s_cmp_lt_u32 s50, 80
    s_cselect_b64 vcc, -1, 0
    s_nop 1
    v_cndmask_b32 v30, v30, v31, vcc
    """)
    ACC = 32
    FB = 64
    KS = 32

    def issue_groups(step):
        st = step % NS
        g = []
        g.append([f"s_add_u32 s40, s36, {st * SS}", "s_mov_b32 m0, s40", f"s_add_u32 s41, s42, {step}",
                  "s_and_b32 s41, s41, 31", "s_lshl_b32 s39, s41, 7",
                  "buffer_load_dwordx4 v8, s[8:11], s39 offen lds"])
        for j in range(1, 4):
            g.append([f"buffer_load_dwordx4 v{8 + j}, s[8:11], s39 offen offset:{j * 1024} lds"])
        g.append([f"s_add_u32 s40, s37, {st * SS}", "s_mov_b32 m0, s40", "s_lshl_b32 s38, s41, 13",
                  "buffer_load_dwordx4 v4, s[16:19], s38 offen lds"])
        g.append(["buffer_load_dwordx4 v4, s[16:19], s38 offen offset:1024 lds"])
        return g

    def issue(step):
        for g in issue_groups(step):
            for ins in g:
                A(ins)

    def rd_list(step):
        st = step % NS
        h = st >> 1
        so = (st & 1) * SS
        fb = FB + (step & 1) * 48
        out = []
        for ks in range(2):
            for mt in range(4):
                out.append(f"ds_read_b128 {vr(fb + (ks * 4 + mt) * 4, 4)}, v{18 + h * 3} offset:{so + mt * 2048 + ks * 1024}")
            for nt in range(2):
                out.append(f"ds_read_b128 {vr(fb + 32 + (ks * 2 + nt) * 4, 4)}, v{16 + h * 3 + ks} offset:{so + nt * 2048}")
        return out

    def rd(step):
        for ins in rd_list(step):
            A(ins)

    A(f"s_mul_i32 s42, s32, {ROT}")
    stamp(A, 1)
    PRE = K2PRE
    for s_ in range(PRE):
        issue(s_)
    issued = PRE
    stamp(A, 2)
    A(f"s_waitcnt vmcnt({6 * (PRE - 1)})")
    A("s_barrier")
    stamp(A, 3)
    rd(0)
    A("s_waitcnt lgkmcnt(0)")
    for i in range(KS):
        fb = FB + (i & 1) * 48
        if i + 1 < KS:
            A(f"s_waitcnt vmcnt({6 * (issued - 1 - (i + 1)) + (1 if i > KS - NS else 0)})")
            A("s_barrier")
            if i in (1, 2, 4, 8, 16, 24, 30):
                stamp(A, 4 + (1, 2, 4, 8, 16, 24, 30).index(i))
        if i == KS - NS:
            A("buffer_load_dword v29, v30, s[52:55], 0 offen")
        reads = rd_list(i + 1) if i + 1 < KS else []
        groups = []
        nst = 0
        while issued < KS and issued <= i + NS and nst < 2 and i + 1 < KS:
            groups += issue_groups(issued)
            issued += 1
            nst += 1
        if len(groups) <= 6:
            pos = {p: [k] for k, p in enumerate(K2POS)}
        else:
            pos = {k: [k] for k in range(12)}
        n = 0
        for ks in range(2):
            for mt in range(4):
                for nt in range(2):
                    acc = vr(ACC + (mt * 2 + nt) * 4, 4)
                    a = vr(fb + (ks * 4 + mt) * 4, 4)
                    b = vr(fb + 32 + (ks * 2 + nt) * 4, 4)
                    cc = "0" if (i == 0 and ks == 0) else acc
                    A(f"v_mfma_f32_16x16x32_bf16 {acc}, {a}, {b}, {cc}")
                    if n < len(reads):
                        A(reads[n])
                    for gi in pos.get(n, []):
                        if gi < len(groups):
                            for ins in groups[gi]:
                                A(ins)
                    n += 1
        if i + 1 < KS:
            A("s_waitcnt lgkmcnt(0)")
    A("s_nop 7")
    A("s_nop 1")
    for nt in range(2):
        for grp in range(2):
            o = FB + (nt * 2 + grp) * 4
            t0 = ACC + ((2 * grp) * 2 + nt) * 4
            t1 = ACC + ((2 * grp + 1) * 2 + nt) * 4
            A(f"v_cvt_pk_bf16_f32 v{o}, v{t0}, v{t0 + 1}")
            A(f"v_cvt_pk_bf16_f32 v{o + 1}, v{t0 + 2}, v{t0 + 3}")
            A(f"v_cvt_pk_bf16_f32 v{o + 2}, v{t1}, v{t1 + 1}")
            A(f"v_cvt_pk_bf16_f32 v{o + 3}, v{t1 + 2}, v{t1 + 3}")
            A(f"buffer_store_dwordx4 {vr(o, 4)}, v{6 + nt}, s[20:23], 0 offen offset:{grp * 64}")
    A("s_waitcnt vmcnt(0)") if STAMPS else None
    stamp(A, 11)
    stamp_dump(A, 12, 1, 12)
    A.label("L_k2_end")
    A("s_endpgm")
    return name, kd(name, FB + 96), (256, 256, NS * SS)


def unpack8(A, dst, src):
    for j in range(4):
        A(f"v_lshlrev_b32 v{dst + 2 * j}, 16, v{src + j}")
        A(f"v_and_b32 v{dst + 2 * j + 1}, 0xffff0000, v{src + j}")


def pack8(A, dst, src):
    for j in range(4):
        A(f"v_cvt_pk_bf16_f32 v{dst + j}, v{src + 2 * j}, v{src + 2 * j + 1}")


def topk_rounds(A, keys, tmp, out_s, nrows, sW):
    w1 = sW[0]
    A(f"s_mov_b32 s{w1}, -1")
    for rnd, so in enumerate(out_s):
        for k, t in zip(keys, tmp):
            A(f"v_sub_u32 v{t}, s{w1}, v{k}")
        ts = list(tmp)
        m = ts[0]
        rest = ts[1:]
        while rest:
            if len(rest) >= 2:
                A(f"v_min3_u32 v{m}, v{m}, v{rest[0]}, v{rest[1]}")
                rest = rest[2:]
            else:
                A(f"v_min_u32 v{m}, v{m}, v{rest[0]}")
                rest = rest[1:]
        row_reduce(A, "v_min_u32", m)
        A("s_nop 0")
        for r in range(nrows):
            A(f"v_readlane_b32 s{sW[1 + r]}, v{m}, {16 * r}")
        A("s_nop 0")
        for r in range(1, nrows):
            A(f"s_min_u32 s{sW[1]}, s{sW[1]}, s{sW[1 + r]}")
        A(f"s_sub_u32 s{so}, s{w1}, s{sW[1]}")
        A(f"s_sub_u32 s{w1}, s{so}, 1")
        A("s_nop 0")


def h_from_pqx(A, P, Q, X, H, T):
    unpack8(A, H, P)
    unpack8(A, T, Q)
    for j in range(8):
        A(f"v_sub_f32 v{H + j}, v{H + j}, v{T + j}")
    pack8(A, P, H)
    unpack8(A, H, P)


def h_add_x(A, P, X, H, T):
    unpack8(A, T, X)
    for j in range(8):
        A(f"v_add_f32 v{H + j}, v{H + j}, v{T + j}")
    pack8(A, P, H)
    unpack8(A, H, P)


def gen_k3(A):
    name = "k3_tail_kernel"
    kernel_header(A, name)
    A("""
    s_cmp_ge_u32 s2, 256
    s_cbranch_scc1 L_k3_end
    """)
    stamp(A, 0)
    A("""
    s_load_dwordx2 s[4:5], s[0:1], 0
    s_load_dwordx8 s[40:47], s[0:1], 48
    s_load_dwordx2 s[8:9], s[0:1], 80
    s_load_dwordx2 s[12:13], s[0:1], 96
    v_and_b32 v1, 63, v0
    v_lshrrev_b32 v2, 6, v0
    s_nop 0
    v_readfirstlane_b32 s33, v2
    v_lshlrev_b32 v3, 4, v1
    s_mov_b32 s32, 0x200000
    s_waitcnt lgkmcnt(0)
    """)
    srd(A, 16, 4, 2 << 20)
    srd(A, 20, 40, 1024)
    srd(A, 24, 8, 2 << 20)
    srd_off(A, 28, 12, WS_P, 7 << 20)
    A("""
    s_lshl_b32 s3, s2, 3
    s_add_u32 s3, s3, s33
    s_lshl_b32 s34, s3, 10
    v_add_u32 v4, s34, v3
    buffer_load_dwordx4 v[8:11], v4, s[28:31], 0 offen
    buffer_load_dwordx4 v[12:15], v4, s[28:31], s32 offen
    buffer_load_dwordx4 v[16:19], v4, s[16:19], 0 offen
    buffer_load_dwordx4 v[20:23], v3, s[20:23], 0 offen
    s_waitcnt vmcnt(2)
    """)
    stamp(A, 1)
    P, Q, X, H, T, U = 8, 12, 16, 24, 32, 40
    a5, a6, a7 = 5, 6, 7
    K0 = 48
    h_from_pqx(A, P, Q, X, H, T)
    A("s_waitcnt vmcnt(1)")
    h_add_x(A, P, X, H, T)
    A(f"""
    v_add_f32 v{a5}, v{H}, v{H + 1}
    v_add_f32 v{a6}, v{H + 2}, v{H + 3}
    v_add_f32 v{a5}, v{a5}, v{H + 4}
    v_add_f32 v{a6}, v{a6}, v{H + 5}
    v_add_f32 v{a5}, v{a5}, v{H + 6}
    v_add_f32 v{a6}, v{a6}, v{H + 7}
    v_add_f32 v{a5}, v{a5}, v{a6}
    """)
    wave_sum(A, a5, a6)
    A(f"v_mul_f32 v{a5}, 0x3b000000, v{a5}")
    for j in range(8):
        A(f"v_sub_f32 v{T + j}, v{H + j}, v{a5}")
    A(f"v_mul_f32 v{a6}, v{T}, v{T}")
    for j in range(1, 8):
        A(f"v_fmac_f32 v{a6}, v{T + j}, v{T + j}")
    wave_sum(A, a6, a7)
    A(f"v_mul_f32 v{a6}, 0x3b000000, v{a6}")
    bf16_round(A, a6)
    A(f"v_add_f32 v{a6}, 0x3727c5ac, v{a6}")
    bf16_round(A, a6)
    A(f"v_sqrt_f32 v{a6}, v{a6}")
    A("s_nop 0")
    bf16_round(A, a6)
    bf16_round(A, a5)
    A(f"v_lshrrev_b32 v{K0 + 1}, 16, v{a5}")
    A(f"v_or_b32 v{K0 + 1}, v{K0 + 1}, v{a6}")
    A(f"v_rcp_f32 v{a6}, v{a6}")
    for j in range(8):
        A(f"v_sub_f32 v{T + j}, v{H + j}, v{a5}")
    pack8(A, Q, T)
    unpack8(A, T, Q)
    for j in range(8):
        A(f"v_mul_f32 v{T + j}, v{T + j}, v{a6}")
    pack8(A, Q, T)
    unpack8(A, T, Q)
    A("s_waitcnt vmcnt(0)")
    unpack8(A, U, 20)
    A(f"v_mul_f32 v{a7}, v{T}, v{U}")
    for j in range(1, 8):
        A(f"v_fmac_f32 v{a7}, v{T + j}, v{U + j}")
    wave_sum(A, a7, a6)
    A(f"""
    v_cvt_pk_bf16_f32 v{a7}, v{a7}, v{a7}
    v_and_b32 v{a7}, 0xffff, v{a7}
    v_xor_b32 v{a5}, 0xffff, v{a7}
    v_or_b32 v{a6}, 0x8000, v{a7}
    v_cmp_lt_u32 vcc, 0x7fff, v{a7}
    s_nop 1
    v_cndmask_b32 v{a7}, v{a6}, v{a5}, vcc
    v_lshlrev_b32 v{a7}, 16, v{a7}
    s_sub_u32 s34, 0xfff, s3
    v_or_b32 v{K0}, s34, v{a7}
    s_lshl_b32 s34, s3, 3
    s_add_u32 s34, s34, {WS_REC - WS_P}
    v_mov_b32 v5, s34
    s_mov_b64 exec, 1
    buffer_store_dwordx2 v[48:49], v5, s[28:31], 0 offen sc1
    s_mov_b64 exec, -1
    """)
    for j in range(8):
        A(f"v_add_f32 v{U + j}, v{H + j}, v{T + j}")
    pack8(A, X, U)
    A(f"buffer_store_dwordx4 {vr(X, 4)}, v4, s[24:27], 0 offen sc1")
    stamp(A, 2)
    A(f"""
    s_lshl_b32 s34, s3, 2
    s_add_u32 s34, s34, {WS_FLAGA - WS_P}
    v_mov_b32 v5, s34
    v_mov_b32 v6, 1
    s_waitcnt vmcnt(0)
    s_mov_b64 exec, 1
    buffer_store_dword v6, v5, s[28:31], 0 offen sc1
    s_mov_b64 exec, -1
    s_cmp_ge_u32 s2, 144
    s_cbranch_scc1 L_k3_fin
    s_cmp_ge_u32 s2, 112
    s_cbranch_scc1 L_k3_dn_dma
    s_mov_b32 s69, s2
    """)
    A("""
    s_and_b32 s34, s69, 7
    s_mul_i32 s34, s34, 14
    s_lshr_b32 s35, s69, 3
    s_add_u32 s36, s34, s35
    s_lshl_b32 s36, s36, 5
    v_lshrrev_b32 v5, 1, v1
    s_lshl_b32 s34, s33, 6
    v_add_u32 v5, s34, v5
    s_movk_i32 s35, 3584
    v_mul_lo_u32 v5, v5, s35
    v_and_b32 v6, 1, v1
    v_lshl_add_u32 v5, v6, 4, v5
    v_add_u32 v5, s36, v5
    s_lshl_b32 s37, s33, 11
    """)
    srd(A, 60, 42, 512 * 1792 * 2)
    srd(A, 64, 44, 512 * 1792 * 2)
    for mat in range(2):
        for i in range(2):
            A(f"s_add_u32 s38, s37, {mat * 16384 + i * 1024}")
            A("s_mov_b32 m0, s38")
            A(f"s_mov_b32 s39, {i * 32 * 3584}")
            A(f"buffer_load_dwordx4 v5, {sr(60 + mat * 4, 4)}, s39 offen lds")
    A("s_branch L_k3_poll")
    A.label("L_k3_dn_dma")
    A("""
    s_sub_u32 s34, s2, 112
    s_and_b32 s35, s34, 7
    s_lshl_b32 s35, s35, 2
    s_lshr_b32 s34, s34, 3
    s_add_u32 s36, s35, s34
    s_lshl_b32 s36, s36, 5
    s_mul_i32 s34, s33, 224
    v_lshrrev_b32 v5, 1, v1
    v_add_u32 v5, s34, v5
    v_lshlrev_b32 v5, 10, v5
    v_and_b32 v6, 1, v1
    v_lshl_add_u32 v5, v6, 4, v5
    v_add_u32 v5, s36, v5
    s_mul_i32 s37, s33, 7*1024
    """)
    srd(A, 60, 46, 1792 * 512 * 2)
    for i in range(7):
        A(f"s_add_u32 s38, s37, {i * 1024}")
        A("s_mov_b32 m0, s38")
        A(f"s_mov_b32 s39, {i * 32 * 1024}")
        A("buffer_load_dwordx4 v5, s[60:63], s39 offen lds")
    A.label("L_k3_poll")
    A(f"""
    v_lshlrev_b32 v6, 5, v0
    v_add_u32 v6, {WS_REC - WS_P}, v6
    """)
    stamp(A, 7)
    A(f"s_sleep {SLEEP0}")
    A.label("L_k3_poll_loop")
    A("""
    buffer_load_dwordx4 v[8:11], v6, s[28:31], 0 offen sc1
    buffer_load_dwordx4 v[12:15], v6, s[28:31], 0 offen offset:16 sc1
    s_waitcnt vmcnt(0)
    v_min_u32 v7, v8, v10
    v_min3_u32 v7, v7, v12, v14
    v_cmp_eq_u32 vcc, 0, v7
    s_cbranch_vccz L_k3_poll_done
    s_sleep 8
    s_branch L_k3_poll_loop
    """)
    A.label("L_k3_poll_done")
    stamp(A, 3)
    CAND = 57344 + 4096
    topk_rounds(A, [8, 10, 12, 14], [16, 17, 18, 19], list(range(48, 56)), 4, [56, 57, 58, 59, 68])
    A("v_mov_b32 v7, 0")
    for c in range(8):
        A(f"v_writelane_b32 v7, s{48 + c}, {c}")
    A(f"""
    s_lshl_b32 s38, s33, 5
    s_add_u32 s38, s38, {CAND}
    v_lshlrev_b32 v16, 2, v1
    v_add_u32 v17, s38, v16
    s_mov_b64 exec, 0xff
    ds_write_b32 v17, v7
    s_mov_b64 exec, -1
    s_waitcnt lgkmcnt(0)
    s_barrier
    v_add_u32 v16, {CAND}, v16
    ds_read_b32 v8, v16
    s_waitcnt lgkmcnt(0)
    """)
    topk_rounds(A, [8], [16], list(range(48, 56)), 4, [56, 57, 58, 59, 68])
    stamp(A, 4)
    A("""
    s_cmp_ge_u32 s2, 112
    s_cbranch_scc1 L_k3_dn
    """)
    XS = 32768
    A("v_mov_b32 v7, 0")
    for c in range(8):
        A(f"v_writelane_b32 v7, s{48 + c}, {c}")
    A(f"""
    s_nop 0
    v_readlane_b32 s38, v7, s33
    s_and_b32 s38, s38, 0x7ff
    s_sub_u32 s38, 0x7ff, s38
    s_lshl_b32 s39, s38, 3
    s_add_u32 s39, s39, {WS_REC - WS_P}
    s_lshl_b32 s38, s38, 10
    v_add_u32 v4, s38, v3
    v_mov_b32 v5, s39
    buffer_load_dwordx4 v[8:11], v4, s[28:31], 0 offen
    buffer_load_dwordx4 v[12:15], v4, s[28:31], s32 offen
    buffer_load_dwordx4 v[16:19], v4, s[16:19], 0 offen
    buffer_load_dwordx2 v[20:21], v5, s[28:31], 0 offen sc1
    s_mul_i32 s38, s33, 1040
    s_add_u32 s38, s38, {XS}
    v_add_u32 v22, s38, v3
    s_waitcnt vmcnt(2)
    """)
    h_from_pqx(A, 8, 12, 16, 24, 32)
    A("s_waitcnt vmcnt(1)")
    h_add_x(A, 8, 16, 24, 32)
    A("""
    s_waitcnt vmcnt(0)
    v_lshlrev_b32 v5, 16, v21
    v_and_b32 v6, 0xffff0000, v21
    v_rcp_f32 v6, v6
    """)
    for j in range(8):
        A(f"v_sub_f32 v{32 + j}, v{24 + j}, v5")
    pack8(A, 12, 32)
    unpack8(A, 32, 12)
    for j in range(8):
        A(f"v_mul_f32 v{32 + j}, v{32 + j}, v6")
    pack8(A, 12, 32)
    A(f"""
    ds_write_b128 v22, v[12:15]
    v_and_b32 v8, 7, v1
    s_movk_i32 s38, 1040
    v_mul_lo_u32 v8, v8, s38
    v_lshrrev_b32 v9, 4, v1
    v_lshl_add_u32 v8, v9, 3, v8
    s_lshl_b32 s38, s33, 7
    s_add_u32 s38, s38, {XS}
    v_add_u32 v8, s38, v8
    v_lshlrev_b32 v10, 3, v1
    v_add_u32 v10, s37, v10
    s_waitcnt lgkmcnt(0)
    s_barrier
    """)
    stamp(A, 5)
    AF = 32
    BF = 48
    for c in range(2):
        A(f"ds_read_b64 {vr(AF + c * 4, 2)}, v8 offset:{c * 64}")
        A(f"ds_read_b64 {vr(AF + c * 4 + 2, 2)}, v8 offset:{c * 64 + 32}")
    for mat in range(2):
        for c in range(2):
            b = BF + (mat * 2 + c) * 4
            A(f"ds_read_b64_tr_b16 {vr(b, 2)}, v10 offset:{mat * 16384 + c * 1024}")
            A(f"ds_read_b64_tr_b16 {vr(b + 2, 2)}, v10 offset:{mat * 16384 + c * 1024 + 512}")
    A("s_waitcnt lgkmcnt(0)")
    for c in range(2):
        for mat in range(2):
            acc = vr(80 + mat * 4, 4)
            cc = "0" if c == 0 else acc
            A(f"v_mfma_f32_16x16x32_bf16 {acc}, {vr(AF + c * 4, 4)}, {vr(BF + (mat * 2 + c) * 4, 4)}, {cc}")
    REDU = 41472
    A(f"""
    s_lshl_b32 s38, s33, 10
    s_add_u32 s38, s38, {REDU}
    v_add_u32 v12, s38, v3
    s_nop 7
    s_mov_b64 exec, 0xffffffff
    ds_write_b128 v12, v[80:83]
    ds_write_b128 v12, v[84:87] offset:512
    s_mov_b64 exec, -1
    s_waitcnt lgkmcnt(0)
    s_barrier
    s_cmp_lg_u32 s33, 0
    s_cbranch_scc1 L_k3_fin
    s_mov_b64 exec, 0xffffffff
    """)
    for w in range(8):
        for mat in range(2):
            A(f"ds_read_b128 {vr(32 + (w * 2 + mat) * 4, 4)}, v3 offset:{REDU + w * 1024 + mat * 512}")
    A("s_waitcnt lgkmcnt(0)")
    for mat in range(2):
        for r in range(4):
            d = 32 + mat * 4 + r
            for w in (1, 3, 5, 7):
                A(f"v_add_f32 v{d + (w - 1) * 8}, v{d + (w - 1) * 8}, v{d + w * 8}")
            A(f"v_add_f32 v{d}, v{d}, v{d + 16}")
            A(f"v_add_f32 v{d + 32}, v{d + 32}, v{d + 48}")
            A(f"v_add_f32 v{d}, v{d}, v{d + 32}")
            bf16_round(A, d)
    for r in range(4):
        g = 32 + r
        u = 36 + r
        t = 40 + r
        A(f"v_mul_f32 v{t}, 0xbfb8aa3b, v{g}")
        A(f"v_exp_f32 v{t}, v{t}")
        A("s_nop 0")
        A(f"v_add_f32 v{t}, 1.0, v{t}")
        A(f"v_rcp_f32 v{t}, v{t}")
        A("s_nop 0")
        A(f"v_mul_f32 v{g}, v{g}, v{t}")
        bf16_round(A, g)
        A(f"v_mul_f32 v{g}, v{g}, v{u}")
        A(f"v_cvt_pk_bf16_f32 v{g}, v{g}, v{g}")
        A(f"v_and_b32 v{g}, 0xffff, v{g}")
        A(f"v_min_u32 v{g}, 0xfffe, v{g}")
    A(f"""
    v_lshrrev_b32 v9, 4, v1
    s_movk_i32 s38, 3584*4
    v_mul_lo_u32 v9, v9, s38
    v_and_b32 v10, 15, v1
    v_lshl_add_u32 v9, v10, 1, v9
    s_add_u32 s38, s36, {WS_ACT - WS_P}
    v_add_u32 v9, s38, v9
    """)
    for r in range(4):
        A(f"s_mov_b32 s39, {r * 3584}")
        A(f"buffer_store_short v{32 + r}, v9, s[28:31], s39 offen sc1")
    A("s_branch L_k3_fin")
    A.label("L_k3_dn")
    ACTL = 0
    REDD = 57344
    G = 96
    A("""
    v_mov_b32 v16, 0
    v_mov_b32 v17, 0
    v_mov_b32 v18, 0
    v_mov_b32 v19, 0
    s_cmp_lg_u32 s33, 0
    s_cbranch_scc1 L_k3_dn_nog
    v_cmp_lt_u32 vcc, 15, v1
    v_and_b32 v10, 15, v1
    v_lshlrev_b32 v10, 1, v10
    v_add_u32 v10, s36, v10
    """)
    for r in range(4):
        A(f"v_mov_b32 v{12 + r}, s{48 + r}")
        A(f"v_mov_b32 v24, s{52 + r}")
        A(f"v_cndmask_b32 v{12 + r}, v{12 + r}, v24, vcc")
        A(f"v_and_b32 v{16 + r}, 0x7ff, v{12 + r}")
        A(f"v_sub_u32 v{16 + r}, 0x7ff, v{16 + r}")
        A(f"v_lshlrev_b32 v{20 + r}, 3, v{16 + r}")
        A(f"v_add_u32 v{20 + r}, {WS_REC - WS_P + 4}, v{20 + r}")
        A(f"v_lshl_add_u32 v{16 + r}, v{16 + r}, 10, v10")
    A("s_mov_b64 exec, 0xffffffff")
    for r in range(4):
        A(f"buffer_load_ushort v{G + r}, v{16 + r}, s[28:31], 0 offen")
        A(f"buffer_load_ushort v{G + 4 + r}, v{16 + r}, s[28:31], s32 offen")
        A(f"buffer_load_dword v{G + 8 + r}, v{20 + r}, s[28:31], 0 offen sc1")
        A(f"buffer_load_ushort v{G + 12 + r}, v{16 + r}, s[16:19], 0 offen")
    A("s_mov_b64 exec, -1")
    A.label("L_k3_dn_nog")
    A("""
    s_cmp_lg_u32 s33, 0
    s_cbranch_scc1 L_k3_fl_wait
    v_mov_b32 v6, 0
    """)
    for c in range(8):
        A(f"v_writelane_b32 v6, s{48 + c}, {c}")
    A(f"""
    v_mov_b32 v7, s48
    v_cmp_gt_u32 vcc, 8, v1
    s_nop 1
    v_cndmask_b32 v6, v7, v6, vcc
    v_and_b32 v6, 0x7ff, v6
    v_sub_u32 v6, 0x7ff, v6
    v_lshlrev_b32 v6, 2, v6
    v_add_u32 v6, {WS_FLAGA - WS_P}, v6
    """)
    A.label("L_k3_fl_loop")
    A("""
    buffer_load_dword v8, v6, s[28:31], 0 offen sc1
    s_waitcnt vmcnt(0)
    v_cmp_eq_u32 vcc, 0, v8
    s_cbranch_vccz L_k3_fl_wait
    s_sleep 8
    s_branch L_k3_fl_loop
    """)
    A.label("L_k3_fl_wait")
    A("""
    v_lshlrev_b32 v7, 3, v1
    v_add_u32 v7, s37, v7
    s_waitcnt vmcnt(0)
    """)
    for c in range(7):
        b = 64 + c * 4
        A(f"ds_read_b64_tr_b16 {vr(b, 2)}, v7 offset:{c * 1024}")
        A(f"ds_read_b64_tr_b16 {vr(b + 2, 2)}, v7 offset:{c * 1024 + 512}")
    A("s_waitcnt lgkmcnt(0)")
    A("s_barrier")
    A(f"""
    s_mul_i32 s38, s33, 3584
    s_add_u32 s38, s38, {WS_ACT - WS_P}
    v_add_u32 v5, s38, v3
    s_mul_i32 s38, s33, 3600
    s_add_u32 s38, s38, {ACTL}
    v_add_u32 v6, s38, v3
    v_mov_b32 v44, 0
    v_mov_b32 v45, 0
    v_mov_b32 v46, 0
    v_mov_b32 v47, 0
    s_sleep {SLEEP1}
    """)
    A.label("L_k3_act_loop")
    for i in range(3):
        A(f"buffer_load_dwordx4 {vr(32 + i * 4, 4)}, v5, s[28:31], 0 offen offset:{i * 1024} sc1")
    A("""
    s_mov_b64 exec, 0xffffffff
    buffer_load_dwordx4 v[44:47], v5, s[28:31], 0 offen offset:3072 sc1
    s_mov_b64 exec, -1
    s_waitcnt vmcnt(0)
    v_pk_max_u16 v8, v32, v33
    """)
    for i in range(34, 48):
        A(f"v_pk_max_u16 v8, v8, v{i}")
    A("""
    v_lshrrev_b32 v9, 16, v8
    v_and_b32 v8, 0xffff, v8
    v_max_u32 v8, v8, v9
    v_cmp_eq_u32 vcc, 0xffff, v8
    s_cbranch_vccz L_k3_act_done
    s_sleep 4
    s_branch L_k3_act_loop
    """)
    A.label("L_k3_act_done")
    stamp(A, 5)
    for i in range(3):
        A(f"ds_write_b128 v6, {vr(32 + i * 4, 4)} offset:{i * 1024}")
    A(f"""
    s_mov_b64 exec, 0xffffffff
    ds_write_b128 v6, v[44:47] offset:3072
    s_mov_b64 exec, -1
    v_lshlrev_b32 v7, 3, v1
    v_add_u32 v7, s37, v7
    v_and_b32 v5, 7, v1
    s_movk_i32 s38, 3600
    v_mul_lo_u32 v5, v5, s38
    v_lshrrev_b32 v6, 4, v1
    v_lshl_add_u32 v5, v6, 3, v5
    s_mul_i32 s38, s33, 448
    s_add_u32 s38, s38, {ACTL}
    v_add_u32 v5, s38, v5
    s_waitcnt lgkmcnt(0)
    s_barrier
    """)
    AF = 32
    BF = 64
    for c in range(7):
        A(f"ds_read_b64 {vr(AF + c * 4, 2)}, v5 offset:{c * 64}")
        A(f"ds_read_b64 {vr(AF + c * 4 + 2, 2)}, v5 offset:{c * 64 + 32}")
    A("s_waitcnt lgkmcnt(0)")
    for c in range(7):
        acc = vr(24, 4)
        cc = "0" if c == 0 else acc
        A(f"v_mfma_f32_16x16x32_bf16 {acc}, {vr(AF + c * 4, 4)}, {vr(BF + c * 4, 4)}, {cc}")
    A(f"""
    s_lshl_b32 s38, s33, 9
    s_add_u32 s38, s38, {REDD}
    v_add_u32 v8, s38, v3
    s_nop 7
    s_mov_b64 exec, 0xffffffff
    ds_write_b128 v8, v[24:27]
    s_mov_b64 exec, -1
    s_waitcnt lgkmcnt(0)
    s_barrier
    s_cmp_lg_u32 s33, 0
    s_cbranch_scc1 L_k3_fin
    s_mov_b64 exec, 0xffffffff
    """)
    A(f"v_add_u32 v8, {REDD}, v3")
    for w in range(8):
        A(f"ds_read_b128 {vr(32 + w * 4, 4)}, v8 offset:{w * 512}")
    A("s_waitcnt vmcnt(0) lgkmcnt(0)")
    for r in range(4):
        d = 32 + r
        for w in (1, 3, 5, 7):
            A(f"v_add_f32 v{d + (w - 1) * 4}, v{d + (w - 1) * 4}, v{d + w * 4}")
        A(f"v_add_f32 v{d}, v{d}, v{d + 8}")
        A(f"v_add_f32 v{d + 16}, v{d + 16}, v{d + 24}")
        A(f"v_add_f32 v{d}, v{d}, v{d + 16}")
    for r in range(4):
        d = 32 + r
        bf16_round(A, d)
        k = 12 + r
        t = 64
        A(f"v_lshrrev_b32 v{t}, 16, v{k}")
        A(f"v_and_b32 v{t + 1}, 0x7fff, v{t}")
        A(f"v_xor_b32 v{t + 2}, 0xffff, v{t}")
        A(f"v_cmp_lt_u32 vcc, 0x7fff, v{t}")
        A("s_nop 1")
        A(f"v_cndmask_b32 v{t}, v{t + 2}, v{t + 1}, vcc")
        A(f"v_lshlrev_b32 v{t}, 16, v{t}")
        A(f"v_mul_f32 v{t}, 0xbfb8aa3b, v{t}")
        A(f"v_exp_f32 v{t}, v{t}")
        A("s_nop 0")
        A(f"v_add_f32 v{t}, 1.0, v{t}")
        A(f"v_rcp_f32 v{t}, v{t}")
        A("s_nop 0")
        bf16_round(A, t)
        A(f"v_mul_f32 v{d}, v{d}, v{t}")
        bf16_round(A, d)
        p, q, st, x = G + r, G + 4 + r, G + 8 + r, G + 12 + r
        for z in (p, q, x):
            A(f"v_lshlrev_b32 v{z}, 16, v{z}")
        A(f"v_sub_f32 v{p}, v{p}, v{q}")
        bf16_round(A, p)
        A(f"v_add_f32 v{p}, v{p}, v{x}")
        bf16_round(A, p)
        A(f"v_lshlrev_b32 v{q}, 16, v{st}")
        A(f"v_and_b32 v{st}, 0xffff0000, v{st}")
        A(f"v_rcp_f32 v{st}, v{st}")
        A(f"v_sub_f32 v{q}, v{p}, v{q}")
        bf16_round(A, q)
        A(f"v_mul_f32 v{q}, v{q}, v{st}")
        bf16_round(A, q)
        A(f"v_add_f32 v{q}, v{q}, v{d}")
        bf16_round(A, q)
        A(f"v_add_f32 v{p}, v{p}, v{q}")
        A(f"v_cvt_pk_bf16_f32 v{p}, v{p}, v{p}")
        A(f"buffer_store_short v{p}, v{16 + r}, s[24:27], 0 offen sc1")
    A.label("L_k3_fin")
    A("s_waitcnt vmcnt(0)") if STAMPS else None
    stamp(A, 6)
    stamp_dump(A, 9, 2, 12)
    A.label("L_k3_end")
    A("s_endpgm")
    return name, kd(name, 112), (256, 512, K3LDS or (CAND + 256))


HEADER = """; Generated by dev/gen.py -- 3-launch list:
"""


def main():
    global STAMPS, PF_SCHED
    if len(sys.argv) > 2 and sys.argv[2] == "stamps":
        STAMPS = True
    global SLEEP0
    if len(sys.argv) > 3:
        SLEEP0 = int(sys.argv[3])
    if len(sys.argv) > 4:
        PF_SCHED = [int(c) for c in sys.argv[4]]
    global K1_WTOUCH
    if len(sys.argv) > 5:
        K1_WTOUCH = int(sys.argv[5])
    A = Asm()
    gens = [gen_k1, gen_k2, gen_k3]
    kds = []
    launches = []
    for g in gens:
        name, kdtext, (grid, block, lds) = g(A)
        kds.append(kdtext)
        launches.append(f"; @launch kernel={name} grid=({grid},1,1) block=({block},1,1) lds={lds}")
    out = HEADER + "\n".join(launches) + "\n"
    out += '.amdgcn_target "amdgcn-amd-amdhsa--gfx950"\n.text\n'
    out += A.text()
    out += '.section .rodata,"a"\n' + "".join(kds)
    path = sys.argv[1] if len(sys.argv) > 1 else f"cdna_kernels/{NAME}.s"
    open(path, "w").write(out)


if __name__ == "__main__":
    main()
```

```python
import sys

NAME = "sequential_preLN__spectral_fnet__moe_arch_mod__prompt"

WS_BF = 0
WS_P = 4 << 20
WS_Q = 6 << 20
WS_HN = 8 << 20
WS_KEYS = 10 << 20
WS_ACT = (10 << 20) + 65536
WS_SEL = (10 << 20) + 131072
WS_REC = (10 << 20) + 262144
WS_FLAG = WS_REC + 16384
WS_FLAGA = WS_REC + 17408
WS_TOTAL = 11 << 20


class Asm:
    def __init__(self):
        self.lines = []

    def __call__(self, s):
        for ln in s.strip("\n").split("\n"):
            ln = ln.strip()
            if ln:
                self.lines.append("    " + ln)

    def label(self, s):
        self.lines.append(s + ":")

    def raw(self, s):
        self.lines.append(s)

    def text(self):
        return "\n".join(self.lines) + "\n"


def vr(a, n):
    return f"v[{a}:{a + n - 1}]"


def sr(a, n):
    return f"s[{a}:{a + n - 1}]"


def srd(A, d, base, nbytes):
    A(f"s_mov_b32 s{d}, s{base}")
    A(f"s_and_b32 s{d + 1}, s{base + 1}, 0xffff")
    A(f"s_mov_b32 s{d + 2}, {nbytes:#x}")
    A(f"s_mov_b32 s{d + 3}, 0x00020000")


def srd_off(A, d, base, off, nbytes):
    A(f"s_add_u32 s{d}, s{base}, {off:#x}")
    A(f"s_addc_u32 s{d + 1}, s{base + 1}, 0")
    A(f"s_and_b32 s{d + 1}, s{d + 1}, 0xffff")
    A(f"s_mov_b32 s{d + 2}, {nbytes:#x}")
    A(f"s_mov_b32 s{d + 3}, 0x00020000")


DPP = "row_mask:0xf bank_mask:0xf"


def row_reduce(A, op, v):
    A("s_nop 1")
    A(f"{op}_dpp v{v}, v{v}, v{v} quad_perm:[1,0,3,2] {DPP}")
    A("s_nop 1")
    A(f"{op}_dpp v{v}, v{v}, v{v} quad_perm:[2,3,0,1] {DPP}")
    A("s_nop 1")
    A(f"{op}_dpp v{v}, v{v}, v{v} row_half_mirror {DPP}")
    A("s_nop 1")
    A(f"{op}_dpp v{v}, v{v}, v{v} row_mirror {DPP}")


def cross_rows_sum(A, v, tmp):
    A(f"v_mov_b32 v{tmp}, v{v}")
    A("s_nop 1")
    A(f"v_permlane16_swap_b32 v{v}, v{tmp}")
    A("s_nop 1")
    A(f"v_add_f32 v{v}, v{v}, v{tmp}")
    A(f"v_mov_b32 v{tmp}, v{v}")
    A("s_nop 1")
    A(f"v_permlane32_swap_b32 v{v}, v{tmp}")
    A("s_nop 1")
    A(f"v_add_f32 v{v}, v{v}, v{tmp}")


def wave_sum(A, v, tmp):
    row_reduce(A, "v_add_f32", v)
    cross_rows_sum(A, v, tmp)


def bf16_round(A, v):
    A(f"v_cvt_pk_bf16_f32 v{v}, v{v}, v{v}")
    A(f"v_lshlrev_b32 v{v}, 16, v{v}")


STAMPS = False
SLEEP0 = 32
K1_WTOUCH = 0
K2PRE = 4
K2POS = [1, 3, 6, 8, 11, 13]
K1_EARLY = 4
ROT = 4
K3LDS = 0
SLEEP1 = 50
PF_SCHED = [3, 3, 4, 4, 4, 9, 9, 9]
WS_STAMP = 12 << 20


def stamp(A, i):
    if STAMPS:
        A(f"s_memtime s[90:91]")
        A("s_waitcnt lgkmcnt(0)")
        A(f"s_mov_b32 s{76 + i}, s90")


def stamp_dump(A, n, kidx, ws_lo):
    if STAMPS:
        A("s_mov_b64 exec, -1")
        A("v_mov_b32 v1, 0")
        for i in range(n):
            A(f"s_sub_u32 s91, s{76 + i}, s76")
            A(f"v_writelane_b32 v1, s91, {i}")
        A(f"s_add_u32 s92, s{ws_lo}, {WS_STAMP + kidx * (1 << 20):#x}")
        A(f"s_addc_u32 s93, s{ws_lo + 1}, 0")
        A("s_and_b32 s93, s93, 0xffff")
        A("s_mov_b32 s94, 0x100000")
        A("s_mov_b32 s95, 0x00020000")
        A("v_lshlrev_b32 v2, 2, v0")
        A("s_lshl_b32 s91, s2, 12")
        A("v_add_u32 v2, s91, v2")
        A("buffer_store_dword v1, v2, s[92:95], 0 offen")


def kernel_header(A, name):
    A.raw(f".globl {name}")
    A.raw(".p2align 8")
    A.raw(f".type {name},@function")
    A.label(name)


def kd(name, vgpr, sgpr=96):
    acc = (vgpr + 3) // 4 * 4
    return f""".p2align 6
.amdhsa_kernel {name}
  .amdhsa_next_free_vgpr {vgpr}
  .amdhsa_next_free_sgpr {sgpr}
  .amdhsa_accum_offset {acc}
  .amdhsa_group_segment_fixed_size 0
  .amdhsa_kernarg_size 104
  .amdhsa_user_sgpr_count 2
  .amdhsa_user_sgpr_kernarg_segment_ptr 1
  .amdhsa_system_sgpr_workgroup_id_x 1
  .amdhsa_float_denorm_mode_32 3
.end_amdhsa_kernel
"""


def gen_k1(A):
    name = "k1_lngemm_kernel"
    kernel_header(A, name)
    A("""
    s_cmp_ge_u32 s2, 256
    s_cbranch_scc1 L_k1_end
    """)
    stamp(A, 0)
    A("""
    s_load_dwordx2 s[4:5], s[0:1], 0
    s_load_dwordx8 s[44:51], s[0:1], 8
    s_load_dwordx2 s[12:13], s[0:1], 96
    s_and_b32 s27, s2, 7
    s_lshr_b32 s26, s2, 3
    s_lshr_b32 s30, s26, 3
    s_lshl_b32 s28, s27, 2
    s_add_u32 s28, s28, s30
    s_and_b32 s29, s26, 7
    v_and_b32 v1, 63, v0
    v_lshrrev_b32 v2, 6, v0
    s_nop 0
    v_readfirstlane_b32 s30, v2
    s_and_b32 s32, s30, 1
    s_lshr_b32 s31, s30, 1
    """)
    WL = 32768
    A("""
    v_and_b32 v8, 15, v1
    v_lshrrev_b32 v9, 4, v1
    v_lshlrev_b32 v10, 4, v1
    """)
    A("""
    s_lshl_b32 s33, s28, 6
    s_lshl_b32 s34, s30, 3
    s_add_u32 s33, s33, s34
    v_add_u32 v2, s33, v9
    v_lshlrev_b32 v2, 10, v2
    v_lshl_add_u32 v2, v8, 4, v2
    """)
    A("""
    s_lshl_b32 s33, s32, 7
    v_xor_b32 v4, s33, v10
    s_and_b32 s33, s29, 3
    s_lshl_b32 s33, s33, 7
    s_lshl_b32 s34, s30, 4
    s_add_u32 s33, s33, s34
    s_lshl_b32 s33, s33, 10
    s_lshl_b32 s34, s30, 14
    """)
    A(f"s_add_u32 s34, s34, {WL}")
    A("""
    s_lshr_b32 s35, s27, 1
    s_lshl_b32 s35, s35, 21
    s_lshl_b32 s36, s26, 16
    s_add_u32 s35, s35, s36
    s_lshl_b32 s36, s30, 13
    s_add_u32 s35, s35, s36
    v_lshlrev_b32 v5, 7, v1
    v_add_u32 v5, s35, v5
    """)
    A("""
    s_and_b32 s37, s29, 3
    s_lshl_b32 s37, s37, 1
    s_lshr_b32 s38, s30, 2
    s_add_u32 s37, s37, s38
    s_lshr_b32 s36, s29, 2
    s_lshl_b32 s35, s36, 21
    s_lshl_b32 s37, s37, 18
    s_add_u32 s35, s35, s37
    s_lshl_b32 s37, s28, 13
    s_add_u32 s35, s35, s37
    s_and_b32 s37, s31, 1
    s_lshl_b32 s37, s37, 12
    s_add_u32 s35, s35, s37
    s_lshl_b32 s37, s32, 10
    s_add_u32 s35, s35, s37
    v_add_u32 v3, s35, v10
    s_waitcnt lgkmcnt(0)
    """)
    srd(A, 16, 4, 2048 * 512 * 2)
    A("""
    s_cmp_eq_u32 s36, 0
    s_cselect_b32 s20, s48, s50
    s_cselect_b32 s21, s49, s51
    s_and_b32 s21, s21, 0xffff
    s_mov_b32 s22, 0x80000
    s_mov_b32 s23, 0x00020000
    s_and_b32 s37, s27, 1
    s_cmp_eq_u32 s37, 0
    s_cselect_b32 s52, s44, s46
    s_cselect_b32 s53, s45, s47
    s_and_b32 s53, s53, 0xffff
    s_mov_b32 s54, 0x800000
    s_mov_b32 s55, 0x00020000
    """)
    srd_off(A, 56, 12, WS_BF, 4 << 20)
    XB = 64
    for g in range(2):
        A(f"s_mov_b32 s38, {g * 4096}")
        for j in range(4):
            A(f"buffer_load_dwordx4 {vr(XB + (g * 4 + j) * 4, 4)}, v2, s[16:19], s38 offen offset:{j * 256}")
    if K1_WTOUCH:
        A("""
        s_cmp_ge_u32 s30, 4
        s_cbranch_scc1 L_k1_nwt
        s_and_b32 s40, s29, 3
        s_lshl_b32 s40, s40, 7
        s_and_b32 s41, s28, 3
        s_lshl_b32 s41, s41, 5
        s_add_u32 s40, s40, s41
        s_lshl_b32 s41, s30, 3
        s_add_u32 s40, s40, s41
        s_lshl_b32 s40, s40, 10
        v_lshlrev_b32 v7, 7, v1
        buffer_load_dword v6, v7, s[20:23], s40 offen
        """)
        A.label("L_k1_nwt")
    dma_groups = []
    for r4 in range(4):
        for rr in range(4):
            r = r4 * 4 + rr
            f = ((r >> 3) * 4 + (r & 3)) * 16
            g = []
            if rr == 0:
                g += [f"s_add_u32 s43, s34, {r4 * 4096}", "s_mov_b32 m0, s43", f"s_add_u32 s41, s33, {r4 * 4096}"]
            g += [f"v_xor_b32 v7, {f:#x}, v4",
                  f"buffer_load_dwordx4 v7, s[20:23], s41 offen offset:{rr * 1024} lds"]
            dma_groups.append(g)
    NEARLY = K1_EARLY
    for g in dma_groups[:NEARLY]:
        for ins in g:
            A(ins)
    dma_rest = dma_groups[NEARLY:]

    def dma_next():
        if dma_rest:
            for ins in dma_rest.pop(0):
                A(ins)
    pfn = [0]
    sched = PF_SCHED

    def pf(point):
        waves = [w for w in range(8) if sched[w] == point]
        if not waves:
            return
        n = pfn[0]
        pfn[0] += 1
        mask = sum(1 << w for w in waves)
        A(f"s_mov_b32 s42, {mask}")
        A("s_bitcmp0_b32 s42, s30")
        A(f"s_cbranch_scc1 L_k1_pf{n}")
        A("buffer_load_dword v6, v5, s[52:55], 0 offen")
        A.label(f"L_k1_pf{n}")

    pf(0)
    stamp(A, 1)
    A("""
    s_and_b32 s40, s30, 3
    s_lshl_b32 s40, s40, 2
    v_add_u32 v14, s40, v9
    v_xor_b32 v14, v14, v8
    v_lshlrev_b32 v14, 4, v14
    s_lshl_b32 s40, s30, 3
    v_add_u32 v15, s40, v9
    v_lshl_add_u32 v16, v15, 9, v14
    v_add_u32 v17, 2048, v16
    """)
    A(f"""
    v_lshrrev_b32 v14, 2, v8
    v_lshlrev_b32 v14, 3, v14
    v_and_b32 v15, 3, v8
    v_add_u32 v14, v14, v15
    s_lshl_b32 s40, s32, 5
    v_add_u32 v15, s40, v14
    v_lshlrev_b32 v15, 9, v15
    s_lshl_b32 s40, s31, 5
    v_add_u32 v14, s40, v14
    v_lshlrev_b32 v14, 10, v14
    v_add_u32 v14, {WL}, v14
    """)
    for k3 in range(4):
        A(f"v_add_u32 v18, {k3 * 4}, v9")
        A("v_xor_b32 v18, v18, v8")
        A(f"v_lshl_add_u32 v{20 + k3}, v18, 4, v15")
        A(f"v_lshl_add_u32 v{24 + k3}, v18, 4, v14")
    A("v_mov_b32 v19, 0x3f803f80")
    if K1_WTOUCH:
        A(f"s_waitcnt vmcnt({NEARLY + 1})")
        A("s_cmp_lt_u32 s30, 4")
        A("s_cbranch_scc1 L_k1_xok")
    A(f"s_waitcnt vmcnt({NEARLY})")
    if K1_WTOUCH:
        A.label("L_k1_xok")
    stamp(A, 2)
    pf(1)
    T = 96
    NG = 2
    for g in range(NG):
        sm = 28 + g
        A(f"v_mov_b32 v{sm}, 0")
        for r in range(16):
            A(f"v_dot2_f32_bf16 v{sm}, v{XB + g * 16 + r}, v19, v{sm}")
            if r % 8 == 7:
                dma_next()
    A("s_nop 1")
    for g in range(NG):
        row_reduce(A, "v_add_f32", 28 + g)
    for g in range(NG):
        sm = 28 + g
        mb = 32 + g
        A(f"v_mul_f32 v{sm}, 0x3b000000, v{sm}")
        A(f"v_mov_b32 v{mb}, v{sm}")
        bf16_round(A, mb)
        A(f"v_sub_f32 v{sm}, v{sm}, v{mb}")
    for g in range(NG):
        q0 = T + 8 + g * 2
        A(f"v_mov_b32 v{q0}, 0")
        A(f"v_mov_b32 v{q0 + 1}, 0")
        for r in range(16):
            x = XB + g * 16 + r
            t = T + 16 + (r & 3) * 2
            A(f"v_lshlrev_b32 v{t}, 16, v{x}")
            A(f"v_and_b32 v{t + 1}, 0xffff0000, v{x}")
            A(f"v_sub_f32 v{t}, v{t}, v{32 + g}")
            A(f"v_sub_f32 v{t + 1}, v{t + 1}, v{32 + g}")
            A(f"v_fmac_f32 v{q0}, v{t}, v{t}")
            A(f"v_fmac_f32 v{q0 + 1}, v{t + 1}, v{t + 1}")
            A(f"v_cvt_pk_bf16_f32 v{x}, v{t}, v{t + 1}")
            if r % 3 == 2:
                dma_next()
        A(f"v_add_f32 v{36 + g}, v{q0}, v{q0 + 1}")
    while dma_rest:
        dma_next()
    pf(2)
    for g in range(NG):
        row_reduce(A, "v_add_f32", 36 + g)
    for g in range(NG):
        vv = 36 + g
        A(f"v_mul_f32 v{vv}, 0x3b000000, v{vv}")
        A(f"v_fma_f32 v{vv}, -v{28 + g}, v{28 + g}, v{vv}")
        A(f"v_max_f32 v{vv}, 0, v{vv}")
        bf16_round(A, vv)
        A(f"v_add_f32 v{vv}, 0x3727c5ac, v{vv}")
        bf16_round(A, vv)
        A(f"v_sqrt_f32 v{vv}, v{vv}")
        A("s_nop 0")
        bf16_round(A, vv)
        A(f"v_rcp_f32 v{T + g}, v{vv}")
    A("s_nop 0")
    for g in range(NG):
        for r in range(16):
            x = XB + g * 16 + r
            t = T + 16 + (r & 3) * 2
            A(f"v_lshlrev_b32 v{t}, 16, v{x}")
            A(f"v_and_b32 v{t + 1}, 0xffff0000, v{x}")
            A(f"v_mul_f32 v{t}, v{t}, v{T + g}")
            A(f"v_mul_f32 v{t + 1}, v{t + 1}, v{T + g}")
            A(f"v_cvt_pk_bf16_f32 v{x}, v{t}, v{t + 1}")
            if (r & 3) == 3 and (r >> 2) < 2:
                j = r >> 2
                A(f"ds_write_b128 v{16 + g}, {vr(XB + (g * 4 + j) * 4, 4)} offset:{j * 256}")
    pf(3)
    stamp(A, 3)
    ACC = 32
    FB = 96

    def rd_list(kc):
        fb = FB + (kc & 1) * 16
        kcl = kc & 7
        out = []
        for h in range(2):
            out.append(f"ds_read_b128 {vr(fb + h * 4, 4)}, v{20 + (kcl & 3)} offset:{h * 2048 + (kcl >> 2) * 256}")
        for i in range(2):
            out.append(f"ds_read_b128 {vr(fb + 8 + i * 4, 4)}, v{24 + (kc & 3)} offset:{i * 4096 + (kc >> 2) * 256}")
        return out

    A("""
    s_waitcnt vmcnt(1) lgkmcnt(0)
    """)
    A(f"s_mov_b32 s42, {sum(1 << w for w in range(8) if sched[w] <= 3)}")
    A("""
    s_bitcmp1_b32 s42, s30
    s_cbranch_scc1 L_k1_w1
    s_waitcnt vmcnt(0)
    """)
    A.label("L_k1_w1")
    A("s_barrier")
    stamp(A, 4)
    pf(4)
    for half in range(2):
        if half == 1:
            pf(6)
            A("s_barrier")
            for g in range(NG):
                for j in (2, 3):
                    A(f"ds_write_b128 v{16 + g}, {vr(XB + (g * 4 + j) * 4, 4)} offset:{(j - 2) * 256}")
            A("s_waitcnt lgkmcnt(0)")
            A("s_barrier")
        for ins in rd_list(half * 8):
            A(ins)
        for kcl in range(8):
            kc = half * 8 + kcl
            fb = FB + (kc & 1) * 16
            nxt = rd_list(kc + 1) if kcl < 7 else []
            for ins in nxt:
                A(ins)
            if kcl == 4:
                pf(5 + 2 * half)
            A(f"s_waitcnt lgkmcnt({len(nxt)})")
            for h in range(2):
                for ii in range(2):
                    acc = vr(ACC + (h * 2 + ii) * 4, 4)
                    a = vr(fb + h * 4, 4)
                    b = vr(fb + 8 + ii * 4, 4)
                    cc = "0" if kc == 0 else acc
                    A(f"v_mfma_f32_16x16x32_bf16 {acc}, {a}, {b}, {cc}")
    A("s_nop 7")
    A("s_nop 1")
    stamp(A, 5)
    for i in range(2):
        o = FB + i * 4
        t0 = ACC + (0 * 2 + i) * 4
        t1 = ACC + (1 * 2 + i) * 4
        A(f"v_cvt_pk_bf16_f32 v{o}, v{t0}, v{t0 + 1}")
        A(f"v_cvt_pk_bf16_f32 v{o + 1}, v{t0 + 2}, v{t0 + 3}")
        A(f"v_cvt_pk_bf16_f32 v{o + 2}, v{t1}, v{t1 + 1}")
        A(f"v_cvt_pk_bf16_f32 v{o + 3}, v{t1 + 2}, v{t1 + 3}")
        A(f"buffer_store_dwordx4 {vr(o, 4)}, v3, s[56:59], 0 offen offset:{i * 2048}")
    A("s_waitcnt vmcnt(0)") if STAMPS else None
    stamp(A, 6)
    stamp_dump(A, 7, 0, 12)
    A.label("L_k1_end")
    A("s_endpgm")
    return name, kd(name, 128), (256, 512, 163840)


def gen_k2(A, NS=6):
    name = "k2_gemm_kernel"
    kernel_header(A, name)
    A("""
    s_cmp_ge_u32 s2, 256
    s_cbranch_scc1 L_k2_end
    """)
    stamp(A, 0)
    A("""
    s_load_dwordx4 s[4:7], s[0:1], 8
    s_load_dwordx2 s[12:13], s[0:1], 96
    s_load_dwordx4 s[44:47], s[0:1], 56
    s_load_dwordx2 s[48:49], s[0:1], 72
    s_and_b32 s28, s2, 7
    s_lshr_b32 s29, s2, 3
    s_and_b32 s30, s28, 1
    s_lshr_b32 s31, s28, 1
    s_lshl_b32 s31, s31, 2
    s_lshr_b32 s32, s29, 3
    s_add_u32 s31, s31, s32
    s_and_b32 s32, s29, 7
    v_and_b32 v1, 63, v0
    v_lshrrev_b32 v2, 6, v0
    s_nop 0
    v_readfirstlane_b32 s33, v2
    """)
    SS = 24576
    A("""
    v_and_b32 v12, 15, v1
    v_lshrrev_b32 v13, 4, v1
    v_and_b32 v14, 7, v1
    v_lshrrev_b32 v15, 3, v1
    s_lshl_b32 s34, s31, 7
    s_lshl_b32 s35, s33, 5
    s_add_u32 s34, s34, s35
    v_add_u32 v2, s34, v15
    v_lshlrev_b32 v2, 12, v2
    v_xor_b32 v3, v14, v15
    v_lshl_add_u32 v8, v3, 4, v2
    """)
    for j in range(1, 4):
        A(f"v_add_u32 v{8 + j}, {j * 32768 - j * 1024:#x}, v8")
    A("""
    v_lshlrev_b32 v5, 4, v1
    s_lshl_b32 s35, s33, 11
    v_add_u32 v4, s35, v5
    """)
    A("""
    v_add_u32 v2, s34, v12
    v_lshlrev_b32 v6, 10, v2
    v_lshl_add_u32 v6, v13, 4, v6
    s_lshl_b32 s36, s30, 21
    s_lshl_b32 s37, s32, 7
    s_add_u32 s36, s36, s37
    v_add_u32 v6, s36, v6
    v_add_u32 v7, 0x4000, v6
    """)
    NH = (NS + 1) // 2
    A("""
    s_lshl_b32 s36, s33, 12
    v_lshlrev_b32 v2, 7, v12
    v_add_u32 v2, s36, v2
    v_xor_b32 v3, v13, v14
    v_lshl_add_u32 v16, v3, 4, v2
    v_xor_b32 v17, 64, v16
    v_add_u32 v18, 0x4000, v5
    """)
    for h in range(1, NH):
        for k in range(3):
            A(f"v_add_u32 v{16 + h * 3 + k}, {h * 2 * SS:#x}, v{16 + k}")
    A("""
    s_waitcnt lgkmcnt(0)
    s_cmp_eq_u32 s30, 0
    s_cselect_b32 s8, s4, s6
    s_cselect_b32 s9, s5, s7
    s_and_b32 s9, s9, 0xffff
    s_mov_b32 s10, 0x800000
    s_mov_b32 s11, 0x00020000
    """)
    A("""
    s_lshl_b32 s37, s30, 21
    s_lshl_b32 s38, s32, 18
    s_add_u32 s37, s37, s38
    s_add_u32 s16, s12, s37
    s_addc_u32 s17, s13, 0
    s_and_b32 s17, s17, 0xffff
    s_mov_b32 s18, 0x40000
    s_mov_b32 s19, 0x00020000
    s_add_u32 s37, s35, 16384
    """)
    srd_off(A, 20, 12, WS_P, 7 << 20)
    A(f"""
    s_cmp_ge_u32 s2, 53
    s_cbranch_scc1 L_k2_nz
    s_cmp_lg_u32 s33, 0
    s_cbranch_scc1 L_k2_nz
    s_lshl_b32 s38, s2, 10
    s_add_u32 s39, s38, {WS_ACT - WS_P - 25 * 1024}
    s_add_u32 s38, s38, {WS_REC - WS_P}
    s_cmp_lt_u32 s2, 25
    s_cselect_b32 s38, s38, s39
    s_cselect_b32 s39, 0, -1
    v_mov_b32 v32, s39
    v_mov_b32 v33, s39
    v_mov_b32 v34, s39
    v_mov_b32 v35, s39
    buffer_store_dwordx4 v[32:35], v5, s[20:23], s38 offen
    s_waitcnt vmcnt(0)
    """)
    A.label("L_k2_nz")
    A("""
    s_lshl_b32 s50, s29, 2
    s_add_u32 s50, s50, s33
    s_cmp_lt_u32 s50, 40
    s_cselect_b32 s52, s44, s46
    s_cselect_b32 s53, s45, s47
    s_cselect_b32 s51, 0, 40
    s_cmp_lt_u32 s50, 80
    s_cselect_b32 s52, s52, s48
    s_cselect_b32 s53, s53, s49
    s_cselect_b32 s51, s51, 80
    s_and_b32 s53, s53, 0xffff
    s_mov_b32 s54, 0x1c0000
    s_mov_b32 s55, 0x00020000
    s_sub_u32 s51, s50, s51
    s_lshl_b32 s51, s51, 6
    v_add_u32 v30, s51, v1
    s_mov_b32 s51, 52429
    v_mul_lo_u32 v31, v30, s51
    v_lshrrev_b32 v31, 18, v31
    v_mul_u32_u24 v29, 5, v31
    v_sub_u32 v29, v30, v29
    s_movk_i32 s51, 3584
    v_mul_lo_u32 v31, v31, s51
    v_lshl_add_u32 v31, v29, 7, v31
    s_mul_i32 s51, s28, 448
    s_and_b32 s51, s51, 0xffffff80
    v_add_u32 v31, s51, v31
    v_lshlrev_b32 v30, 10, v30
    s_lshl_b32 s51, s28, 7
    v_add_u32 v30, s51, v30
    s_cmp_lt_u32 s50, 80
    s_cselect_b64 vcc, -1, 0
    s_nop 1
    v_cndmask_b32 v30, v30, v31, vcc
    """)
    ACC = 32
    FB = 64
    KS = 32

    def issue_groups(step):
        st = step % NS
        g = []
        g.append([f"s_add_u32 s40, s36, {st * SS}", "s_mov_b32 m0, s40", f"s_add_u32 s41, s42, {step}",
                  "s_and_b32 s41, s41, 31", "s_lshl_b32 s39, s41, 7",
                  "buffer_load_dwordx4 v8, s[8:11], s39 offen lds"])
        for j in range(1, 4):
            g.append([f"buffer_load_dwordx4 v{8 + j}, s[8:11], s39 offen offset:{j * 1024} lds"])
        g.append([f"s_add_u32 s40, s37, {st * SS}", "s_mov_b32 m0, s40", "s_lshl_b32 s38, s41, 13",
                  "buffer_load_dwordx4 v4, s[16:19], s38 offen lds"])
        g.append(["buffer_load_dwordx4 v4, s[16:19], s38 offen offset:1024 lds"])
        return g

    def issue(step):
        for g in issue_groups(step):
            for ins in g:
                A(ins)

    def rd_list(step):
        st = step % NS
        h = st >> 1
        so = (st & 1) * SS
        fb = FB + (step & 1) * 48
        out = []
        for ks in range(2):
            for mt in range(4):
                out.append(f"ds_read_b128 {vr(fb + (ks * 4 + mt) * 4, 4)}, v{18 + h * 3} offset:{so + mt * 2048 + ks * 1024}")
            for nt in range(2):
                out.append(f"ds_read_b128 {vr(fb + 32 + (ks * 2 + nt) * 4, 4)}, v{16 + h * 3 + ks} offset:{so + nt * 2048}")
        return out

    def rd(step):
        for ins in rd_list(step):
            A(ins)

    A(f"s_mul_i32 s42, s32, {ROT}")
    stamp(A, 1)
    PRE = K2PRE
    for s_ in range(PRE):
        issue(s_)
    issued = PRE
    stamp(A, 2)
    A(f"s_waitcnt vmcnt({6 * (PRE - 1)})")
    A("s_barrier")
    stamp(A, 3)
    rd(0)
    A("s_waitcnt lgkmcnt(0)")
    for i in range(KS):
        fb = FB + (i & 1) * 48
        if i + 1 < KS:
            A(f"s_waitcnt vmcnt({6 * (issued - 1 - (i + 1)) + (1 if i > KS - NS else 0)})")
            A("s_barrier")
            if i in (1, 2, 4, 8, 16, 24, 30):
                stamp(A, 4 + (1, 2, 4, 8, 16, 24, 30).index(i))
        if i == KS - NS:
            A("buffer_load_dword v29, v30, s[52:55], 0 offen")
        reads = rd_list(i + 1) if i + 1 < KS else []
        groups = []
        nst = 0
        while issued < KS and issued <= i + NS and nst < 2 and i + 1 < KS:
            groups += issue_groups(issued)
            issued += 1
            nst += 1
        if len(groups) <= 6:
            pos = {p: [k] for k, p in enumerate(K2POS)}
        else:
            pos = {k: [k] for k in range(12)}
        n = 0
        for ks in range(2):
            for mt in range(4):
                for nt in range(2):
                    acc = vr(ACC + (mt * 2 + nt) * 4, 4)
                    a = vr(fb + (ks * 4 + mt) * 4, 4)
                    b = vr(fb + 32 + (ks * 2 + nt) * 4, 4)
                    cc = "0" if (i == 0 and ks == 0) else acc
                    A(f"v_mfma_f32_16x16x32_bf16 {acc}, {a}, {b}, {cc}")
                    if n < len(reads):
                        A(reads[n])
                    for gi in pos.get(n, []):
                        if gi < len(groups):
                            for ins in groups[gi]:
                                A(ins)
                    n += 1
        if i + 1 < KS:
            A("s_waitcnt lgkmcnt(0)")
    A("s_nop 7")
    A("s_nop 1")
    for nt in range(2):
        for grp in range(2):
            o = FB + (nt * 2 + grp) * 4
            t0 = ACC + ((2 * grp) * 2 + nt) * 4
            t1 = ACC + ((2 * grp + 1) * 2 + nt) * 4
            A(f"v_cvt_pk_bf16_f32 v{o}, v{t0}, v{t0 + 1}")
            A(f"v_cvt_pk_bf16_f32 v{o + 1}, v{t0 + 2}, v{t0 + 3}")
            A(f"v_cvt_pk_bf16_f32 v{o + 2}, v{t1}, v{t1 + 1}")
            A(f"v_cvt_pk_bf16_f32 v{o + 3}, v{t1 + 2}, v{t1 + 3}")
            A(f"buffer_store_dwordx4 {vr(o, 4)}, v{6 + nt}, s[20:23], 0 offen offset:{grp * 64}")
    A("s_waitcnt vmcnt(0)") if STAMPS else None
    stamp(A, 11)
    stamp_dump(A, 12, 1, 12)
    A.label("L_k2_end")
    A("s_endpgm")
    return name, kd(name, FB + 96), (256, 256, NS * SS)


def unpack8(A, dst, src):
    for j in range(4):
        A(f"v_lshlrev_b32 v{dst + 2 * j}, 16, v{src + j}")
        A(f"v_and_b32 v{dst + 2 * j + 1}, 0xffff0000, v{src + j}")


def pack8(A, dst, src):
    for j in range(4):
        A(f"v_cvt_pk_bf16_f32 v{dst + j}, v{src + 2 * j}, v{src + 2 * j + 1}")


def topk_rounds(A, keys, tmp, out_s, nrows, sW):
    w1 = sW[0]
    A(f"s_mov_b32 s{w1}, -1")
    for rnd, so in enumerate(out_s):
        for k, t in zip(keys, tmp):
            A(f"v_sub_u32 v{t}, s{w1}, v{k}")
        ts = list(tmp)
        m = ts[0]
        rest = ts[1:]
        while rest:
            if len(rest) >= 2:
                A(f"v_min3_u32 v{m}, v{m}, v{rest[0]}, v{rest[1]}")
                rest = rest[2:]
            else:
                A(f"v_min_u32 v{m}, v{m}, v{rest[0]}")
                rest = rest[1:]
        row_reduce(A, "v_min_u32", m)
        A("s_nop 0")
        for r in range(nrows):
            A(f"v_readlane_b32 s{sW[1 + r]}, v{m}, {16 * r}")
        A("s_nop 0")
        for r in range(1, nrows):
            A(f"s_min_u32 s{sW[1]}, s{sW[1]}, s{sW[1 + r]}")
        A(f"s_sub_u32 s{so}, s{w1}, s{sW[1]}")
        A(f"s_sub_u32 s{w1}, s{so}, 1")
        A("s_nop 0")


def h_from_pqx(A, P, Q, X, H, T):
    unpack8(A, H, P)
    unpack8(A, T, Q)
    for j in range(8):
        A(f"v_sub_f32 v{H + j}, v{H + j}, v{T + j}")
    pack8(A, P, H)
    unpack8(A, H, P)


def h_add_x(A, P, X, H, T):
    unpack8(A, T, X)
    for j in range(8):
        A(f"v_add_f32 v{H + j}, v{H + j}, v{T + j}")
    pack8(A, P, H)
    unpack8(A, H, P)


def gen_k3(A):
    name = "k3_tail_kernel"
    kernel_header(A, name)
    A("""
    s_cmp_ge_u32 s2, 256
    s_cbranch_scc1 L_k3_end
    """)
    stamp(A, 0)
    A("""
    s_load_dwordx2 s[4:5], s[0:1], 0
    s_load_dwordx8 s[40:47], s[0:1], 48
    s_load_dwordx2 s[8:9], s[0:1], 80
    s_load_dwordx2 s[12:13], s[0:1], 96
    v_and_b32 v1, 63, v0
    v_lshrrev_b32 v2, 6, v0
    s_nop 0
    v_readfirstlane_b32 s33, v2
    v_lshlrev_b32 v3, 4, v1
    s_mov_b32 s32, 0x200000
    s_waitcnt lgkmcnt(0)
    """)
    srd(A, 16, 4, 2 << 20)
    srd(A, 20, 40, 1024)
    srd(A, 24, 8, 2 << 20)
    srd_off(A, 28, 12, WS_P, 7 << 20)
    A("""
    s_lshl_b32 s3, s2, 3
    s_add_u32 s3, s3, s33
    s_lshl_b32 s34, s3, 10
    v_add_u32 v4, s34, v3
    buffer_load_dwordx4 v[8:11], v4, s[28:31], 0 offen
    buffer_load_dwordx4 v[12:15], v4, s[28:31], s32 offen
    buffer_load_dwordx4 v[16:19], v4, s[16:19], 0 offen
    buffer_load_dwordx4 v[20:23], v3, s[20:23], 0 offen
    s_waitcnt vmcnt(2)
    """)
    stamp(A, 1)
    P, Q, X, H, T, U = 8, 12, 16, 24, 32, 40
    a5, a6, a7 = 5, 6, 7
    K0 = 48
    h_from_pqx(A, P, Q, X, H, T)
    A("s_waitcnt vmcnt(1)")
    h_add_x(A, P, X, H, T)
    A(f"""
    v_add_f32 v{a5}, v{H}, v{H + 1}
    v_add_f32 v{a6}, v{H + 2}, v{H + 3}
    v_add_f32 v{a5}, v{a5}, v{H + 4}
    v_add_f32 v{a6}, v{a6}, v{H + 5}
    v_add_f32 v{a5}, v{a5}, v{H + 6}
    v_add_f32 v{a6}, v{a6}, v{H + 7}
    v_add_f32 v{a5}, v{a5}, v{a6}
    """)
    wave_sum(A, a5, a6)
    A(f"v_mul_f32 v{a5}, 0x3b000000, v{a5}")
    for j in range(8):
        A(f"v_sub_f32 v{T + j}, v{H + j}, v{a5}")
    A(f"v_mul_f32 v{a6}, v{T}, v{T}")
    for j in range(1, 8):
        A(f"v_fmac_f32 v{a6}, v{T + j}, v{T + j}")
    wave_sum(A, a6, a7)
    A(f"v_mul_f32 v{a6}, 0x3b000000, v{a6}")
    bf16_round(A, a6)
    A(f"v_add_f32 v{a6}, 0x3727c5ac, v{a6}")
    bf16_round(A, a6)
    A(f"v_sqrt_f32 v{a6}, v{a6}")
    A("s_nop 0")
    bf16_round(A, a6)
    bf16_round(A, a5)
    A(f"v_lshrrev_b32 v{K0 + 1}, 16, v{a5}")
    A(f"v_or_b32 v{K0 + 1}, v{K0 + 1}, v{a6}")
    A(f"v_rcp_f32 v{a6}, v{a6}")
    for j in range(8):
        A(f"v_sub_f32 v{T + j}, v{H + j}, v{a5}")
    pack8(A, Q, T)
    unpack8(A, T, Q)
    for j in range(8):
        A(f"v_mul_f32 v{T + j}, v{T + j}, v{a6}")
    pack8(A, Q, T)
    unpack8(A, T, Q)
    A("s_waitcnt vmcnt(0)")
    unpack8(A, U, 20)
    A(f"v_mul_f32 v{a7}, v{T}, v{U}")
    for j in range(1, 8):
        A(f"v_fmac_f32 v{a7}, v{T + j}, v{U + j}")
    wave_sum(A, a7, a6)
    A(f"""
    v_cvt_pk_bf16_f32 v{a7}, v{a7}, v{a7}
    v_and_b32 v{a7}, 0xffff, v{a7}
    v_xor_b32 v{a5}, 0xffff, v{a7}
    v_or_b32 v{a6}, 0x8000, v{a7}
    v_cmp_lt_u32 vcc, 0x7fff, v{a7}
    s_nop 1
    v_cndmask_b32 v{a7}, v{a6}, v{a5}, vcc
    v_lshlrev_b32 v{a7}, 16, v{a7}
    s_sub_u32 s34, 0xfff, s3
    v_or_b32 v{K0}, s34, v{a7}
    s_lshl_b32 s34, s3, 3
    s_add_u32 s34, s34, {WS_REC - WS_P}
    v_mov_b32 v5, s34
    s_mov_b64 exec, 1
    buffer_store_dwordx2 v[48:49], v5, s[28:31], 0 offen sc1
    s_mov_b64 exec, -1
    """)
    for j in range(8):
        A(f"v_add_f32 v{U + j}, v{H + j}, v{T + j}")
    pack8(A, X, U)
    A(f"buffer_store_dwordx4 {vr(X, 4)}, v4, s[24:27], 0 offen sc1")
    stamp(A, 2)
    A(f"""
    s_lshl_b32 s34, s3, 2
    s_add_u32 s34, s34, {WS_FLAGA - WS_P}
    v_mov_b32 v5, s34
    v_mov_b32 v6, 1
    s_waitcnt vmcnt(0)
    s_mov_b64 exec, 1
    buffer_store_dword v6, v5, s[28:31], 0 offen sc1
    s_mov_b64 exec, -1
    s_cmp_ge_u32 s2, 144
    s_cbranch_scc1 L_k3_fin
    s_cmp_ge_u32 s2, 112
    s_cbranch_scc1 L_k3_dn_dma
    s_mov_b32 s69, s2
    """)
    A("""
    s_and_b32 s34, s69, 7
    s_mul_i32 s34, s34, 14
    s_lshr_b32 s35, s69, 3
    s_add_u32 s36, s34, s35
    s_lshl_b32 s36, s36, 5
    v_lshrrev_b32 v5, 1, v1
    s_lshl_b32 s34, s33, 6
    v_add_u32 v5, s34, v5
    s_movk_i32 s35, 3584
    v_mul_lo_u32 v5, v5, s35
    v_and_b32 v6, 1, v1
    v_lshl_add_u32 v5, v6, 4, v5
    v_add_u32 v5, s36, v5
    s_lshl_b32 s37, s33, 11
    """)
    srd(A, 60, 42, 512 * 1792 * 2)
    srd(A, 64, 44, 512 * 1792 * 2)
    for mat in range(2):
        for i in range(2):
            A(f"s_add_u32 s38, s37, {mat * 16384 + i * 1024}")
            A("s_mov_b32 m0, s38")
            A(f"s_mov_b32 s39, {i * 32 * 3584}")
            A(f"buffer_load_dwordx4 v5, {sr(60 + mat * 4, 4)}, s39 offen lds")
    A("s_branch L_k3_poll")
    A.label("L_k3_dn_dma")
    A("""
    s_sub_u32 s34, s2, 112
    s_and_b32 s35, s34, 7
    s_lshl_b32 s35, s35, 2
    s_lshr_b32 s34, s34, 3
    s_add_u32 s36, s35, s34
    s_lshl_b32 s36, s36, 5
    s_mul_i32 s34, s33, 224
    v_lshrrev_b32 v5, 1, v1
    v_add_u32 v5, s34, v5
    v_lshlrev_b32 v5, 10, v5
    v_and_b32 v6, 1, v1
    v_lshl_add_u32 v5, v6, 4, v5
    v_add_u32 v5, s36, v5
    s_mul_i32 s37, s33, 7*1024
    """)
    srd(A, 60, 46, 1792 * 512 * 2)
    for i in range(7):
        A(f"s_add_u32 s38, s37, {i * 1024}")
        A("s_mov_b32 m0, s38")
        A(f"s_mov_b32 s39, {i * 32 * 1024}")
        A("buffer_load_dwordx4 v5, s[60:63], s39 offen lds")
    A.label("L_k3_poll")
    A(f"""
    v_lshlrev_b32 v6, 5, v0
    v_add_u32 v6, {WS_REC - WS_P}, v6
    """)
    stamp(A, 7)
    A(f"s_sleep {SLEEP0}")
    A.label("L_k3_poll_loop")
    A("""
    buffer_load_dwordx4 v[8:11], v6, s[28:31], 0 offen sc1
    buffer_load_dwordx4 v[12:15], v6, s[28:31], 0 offen offset:16 sc1
    s_waitcnt vmcnt(0)
    v_min_u32 v7, v8, v10
    v_min3_u32 v7, v7, v12, v14
    v_cmp_eq_u32 vcc, 0, v7
    s_cbranch_vccz L_k3_poll_done
    s_sleep 8
    s_branch L_k3_poll_loop
    """)
    A.label("L_k3_poll_done")
    stamp(A, 3)
    CAND = 57344 + 4096
    topk_rounds(A, [8, 10, 12, 14], [16, 17, 18, 19], list(range(48, 56)), 4, [56, 57, 58, 59, 68])
    A("v_mov_b32 v7, 0")
    for c in range(8):
        A(f"v_writelane_b32 v7, s{48 + c}, {c}")
    A(f"""
    s_lshl_b32 s38, s33, 5
    s_add_u32 s38, s38, {CAND}
    v_lshlrev_b32 v16, 2, v1
    v_add_u32 v17, s38, v16
    s_mov_b64 exec, 0xff
    ds_write_b32 v17, v7
    s_mov_b64 exec, -1
    s_waitcnt lgkmcnt(0)
    s_barrier
    v_add_u32 v16, {CAND}, v16
    ds_read_b32 v8, v16
    s_waitcnt lgkmcnt(0)
    """)
    topk_rounds(A, [8], [16], list(range(48, 56)), 4, [56, 57, 58, 59, 68])
    stamp(A, 4)
    A("""
    s_cmp_ge_u32 s2, 112
    s_cbranch_scc1 L_k3_dn
    """)
    XS = 32768
    A("v_mov_b32 v7, 0")
    for c in range(8):
        A(f"v_writelane_b32 v7, s{48 + c}, {c}")
    A(f"""
    s_nop 0
    v_readlane_b32 s38, v7, s33
    s_and_b32 s38, s38, 0x7ff
    s_sub_u32 s38, 0x7ff, s38
    s_lshl_b32 s39, s38, 3
    s_add_u32 s39, s39, {WS_REC - WS_P}
    s_lshl_b32 s38, s38, 10
    v_add_u32 v4, s38, v3
    v_mov_b32 v5, s39
    buffer_load_dwordx4 v[8:11], v4, s[28:31], 0 offen
    buffer_load_dwordx4 v[12:15], v4, s[28:31], s32 offen
    buffer_load_dwordx4 v[16:19], v4, s[16:19], 0 offen
    buffer_load_dwordx2 v[20:21], v5, s[28:31], 0 offen sc1
    s_mul_i32 s38, s33, 1040
    s_add_u32 s38, s38, {XS}
    v_add_u32 v22, s38, v3
    s_waitcnt vmcnt(2)
    """)
    h_from_pqx(A, 8, 12, 16, 24, 32)
    A("s_waitcnt vmcnt(1)")
    h_add_x(A, 8, 16, 24, 32)
    A("""
    s_waitcnt vmcnt(0)
    v_lshlrev_b32 v5, 16, v21
    v_and_b32 v6, 0xffff0000, v21
    v_rcp_f32 v6, v6
    """)
    for j in range(8):
        A(f"v_sub_f32 v{32 + j}, v{24 + j}, v5")
    pack8(A, 12, 32)
    unpack8(A, 32, 12)
    for j in range(8):
        A(f"v_mul_f32 v{32 + j}, v{32 + j}, v6")
    pack8(A, 12, 32)
    A(f"""
    ds_write_b128 v22, v[12:15]
    v_and_b32 v8, 7, v1
    s_movk_i32 s38, 1040
    v_mul_lo_u32 v8, v8, s38
    v_lshrrev_b32 v9, 4, v1
    v_lshl_add_u32 v8, v9, 3, v8
    s_lshl_b32 s38, s33, 7
    s_add_u32 s38, s38, {XS}
    v_add_u32 v8, s38, v8
    v_lshlrev_b32 v10, 3, v1
    v_add_u32 v10, s37, v10
    s_waitcnt lgkmcnt(0)
    s_barrier
    """)
    stamp(A, 5)
    AF = 32
    BF = 48
    for c in range(2):
        A(f"ds_read_b64 {vr(AF + c * 4, 2)}, v8 offset:{c * 64}")
        A(f"ds_read_b64 {vr(AF + c * 4 + 2, 2)}, v8 offset:{c * 64 + 32}")
    for mat in range(2):
        for c in range(2):
            b = BF + (mat * 2 + c) * 4
            A(f"ds_read_b64_tr_b16 {vr(b, 2)}, v10 offset:{mat * 16384 + c * 1024}")
            A(f"ds_read_b64_tr_b16 {vr(b + 2, 2)}, v10 offset:{mat * 16384 + c * 1024 + 512}")
    A("s_waitcnt lgkmcnt(0)")
    for c in range(2):
        for mat in range(2):
            acc = vr(80 + mat * 4, 4)
            cc = "0" if c == 0 else acc
            A(f"v_mfma_f32_16x16x32_bf16 {acc}, {vr(AF + c * 4, 4)}, {vr(BF + (mat * 2 + c) * 4, 4)}, {cc}")
    REDU = 41472
    A(f"""
    s_lshl_b32 s38, s33, 10
    s_add_u32 s38, s38, {REDU}
    v_add_u32 v12, s38, v3
    s_nop 7
    s_mov_b64 exec, 0xffffffff
    ds_write_b128 v12, v[80:83]
    ds_write_b128 v12, v[84:87] offset:512
    s_mov_b64 exec, -1
    s_waitcnt lgkmcnt(0)
    s_barrier
    s_cmp_lg_u32 s33, 0
    s_cbranch_scc1 L_k3_fin
    s_mov_b64 exec, 0xffffffff
    """)
    for w in range(8):
        for mat in range(2):
            A(f"ds_read_b128 {vr(32 + (w * 2 + mat) * 4, 4)}, v3 offset:{REDU + w * 1024 + mat * 512}")
    A("s_waitcnt lgkmcnt(0)")
    for mat in range(2):
        for r in range(4):
            d = 32 + mat * 4 + r
            for w in (1, 3, 5, 7):
                A(f"v_add_f32 v{d + (w - 1) * 8}, v{d + (w - 1) * 8}, v{d + w * 8}")
            A(f"v_add_f32 v{d}, v{d}, v{d + 16}")
            A(f"v_add_f32 v{d + 32}, v{d + 32}, v{d + 48}")
            A(f"v_add_f32 v{d}, v{d}, v{d + 32}")
            bf16_round(A, d)
    for r in range(4):
        g = 32 + r
        u = 36 + r
        t = 40 + r
        A(f"v_mul_f32 v{t}, 0xbfb8aa3b, v{g}")
        A(f"v_exp_f32 v{t}, v{t}")
        A("s_nop 0")
        A(f"v_add_f32 v{t}, 1.0, v{t}")
        A(f"v_rcp_f32 v{t}, v{t}")
        A("s_nop 0")
        A(f"v_mul_f32 v{g}, v{g}, v{t}")
        bf16_round(A, g)
        A(f"v_mul_f32 v{g}, v{g}, v{u}")
        A(f"v_cvt_pk_bf16_f32 v{g}, v{g}, v{g}")
        A(f"v_and_b32 v{g}, 0xffff, v{g}")
        A(f"v_min_u32 v{g}, 0xfffe, v{g}")
    A(f"""
    v_lshrrev_b32 v9, 4, v1
    s_movk_i32 s38, 3584*4
    v_mul_lo_u32 v9, v9, s38
    v_and_b32 v10, 15, v1
    v_lshl_add_u32 v9, v10, 1, v9
    s_add_u32 s38, s36, {WS_ACT - WS_P}
    v_add_u32 v9, s38, v9
    """)
    for r in range(4):
        A(f"s_mov_b32 s39, {r * 3584}")
        A(f"buffer_store_short v{32 + r}, v9, s[28:31], s39 offen sc1")
    A("s_branch L_k3_fin")
    A.label("L_k3_dn")
    ACTL = 0
    REDD = 57344
    G = 96
    A("""
    v_mov_b32 v16, 0
    v_mov_b32 v17, 0
    v_mov_b32 v18, 0
    v_mov_b32 v19, 0
    s_cmp_lg_u32 s33, 0
    s_cbranch_scc1 L_k3_dn_nog
    v_cmp_lt_u32 vcc, 15, v1
    v_and_b32 v10, 15, v1
    v_lshlrev_b32 v10, 1, v10
    v_add_u32 v10, s36, v10
    """)
    for r in range(4):
        A(f"v_mov_b32 v{12 + r}, s{48 + r}")
        A(f"v_mov_b32 v24, s{52 + r}")
        A(f"v_cndmask_b32 v{12 + r}, v{12 + r}, v24, vcc")
        A(f"v_and_b32 v{16 + r}, 0x7ff, v{12 + r}")
        A(f"v_sub_u32 v{16 + r}, 0x7ff, v{16 + r}")
        A(f"v_lshlrev_b32 v{20 + r}, 3, v{16 + r}")
        A(f"v_add_u32 v{20 + r}, {WS_REC - WS_P + 4}, v{20 + r}")
        A(f"v_lshl_add_u32 v{16 + r}, v{16 + r}, 10, v10")
    A("s_mov_b64 exec, 0xffffffff")
    for r in range(4):
        A(f"buffer_load_ushort v{G + r}, v{16 + r}, s[28:31], 0 offen")
        A(f"buffer_load_ushort v{G + 4 + r}, v{16 + r}, s[28:31], s32 offen")
        A(f"buffer_load_dword v{G + 8 + r}, v{20 + r}, s[28:31], 0 offen sc1")
        A(f"buffer_load_ushort v{G + 12 + r}, v{16 + r}, s[16:19], 0 offen")
    A("s_mov_b64 exec, -1")
    A.label("L_k3_dn_nog")
    A("""
    s_cmp_lg_u32 s33, 0
    s_cbranch_scc1 L_k3_fl_wait
    v_mov_b32 v6, 0
    """)
    for c in range(8):
        A(f"v_writelane_b32 v6, s{48 + c}, {c}")
    A(f"""
    v_mov_b32 v7, s48
    v_cmp_gt_u32 vcc, 8, v1
    s_nop 1
    v_cndmask_b32 v6, v7, v6, vcc
    v_and_b32 v6, 0x7ff, v6
    v_sub_u32 v6, 0x7ff, v6
    v_lshlrev_b32 v6, 2, v6
    v_add_u32 v6, {WS_FLAGA - WS_P}, v6
    """)
    A.label("L_k3_fl_loop")
    A("""
    buffer_load_dword v8, v6, s[28:31], 0 offen sc1
    s_waitcnt vmcnt(0)
    v_cmp_eq_u32 vcc, 0, v8
    s_cbranch_vccz L_k3_fl_wait
    s_sleep 8
    s_branch L_k3_fl_loop
    """)
    A.label("L_k3_fl_wait")
    A("""
    v_lshlrev_b32 v7, 3, v1
    v_add_u32 v7, s37, v7
    s_waitcnt vmcnt(0)
    """)
    for c in range(7):
        b = 64 + c * 4
        A(f"ds_read_b64_tr_b16 {vr(b, 2)}, v7 offset:{c * 1024}")
        A(f"ds_read_b64_tr_b16 {vr(b + 2, 2)}, v7 offset:{c * 1024 + 512}")
    A("s_waitcnt lgkmcnt(0)")
    A("s_barrier")
    A(f"""
    s_mul_i32 s38, s33, 3584
    s_add_u32 s38, s38, {WS_ACT - WS_P}
    v_add_u32 v5, s38, v3
    s_mul_i32 s38, s33, 3600
    s_add_u32 s38, s38, {ACTL}
    v_add_u32 v6, s38, v3
    v_mov_b32 v44, 0
    v_mov_b32 v45, 0
    v_mov_b32 v46, 0
    v_mov_b32 v47, 0
    s_sleep {SLEEP1}
    """)
    A.label("L_k3_act_loop")
    for i in range(3):
        A(f"buffer_load_dwordx4 {vr(32 + i * 4, 4)}, v5, s[28:31], 0 offen offset:{i * 1024} sc1")
    A("""
    s_mov_b64 exec, 0xffffffff
    buffer_load_dwordx4 v[44:47], v5, s[28:31], 0 offen offset:3072 sc1
    s_mov_b64 exec, -1
    s_waitcnt vmcnt(0)
    v_pk_max_u16 v8, v32, v33
    """)
    for i in range(34, 48):
        A(f"v_pk_max_u16 v8, v8, v{i}")
    A("""
    v_lshrrev_b32 v9, 16, v8
    v_and_b32 v8, 0xffff, v8
    v_max_u32 v8, v8, v9
    v_cmp_eq_u32 vcc, 0xffff, v8
    s_cbranch_vccz L_k3_act_done
    s_sleep 4
    s_branch L_k3_act_loop
    """)
    A.label("L_k3_act_done")
    stamp(A, 5)
    for i in range(3):
        A(f"ds_write_b128 v6, {vr(32 + i * 4, 4)} offset:{i * 1024}")
    A(f"""
    s_mov_b64 exec, 0xffffffff
    ds_write_b128 v6, v[44:47] offset:3072
    s_mov_b64 exec, -1
    v_lshlrev_b32 v7, 3, v1
    v_add_u32 v7, s37, v7
    v_and_b32 v5, 7, v1
    s_movk_i32 s38, 3600
    v_mul_lo_u32 v5, v5, s38
    v_lshrrev_b32 v6, 4, v1
    v_lshl_add_u32 v5, v6, 3, v5
    s_mul_i32 s38, s33, 448
    s_add_u32 s38, s38, {ACTL}
    v_add_u32 v5, s38, v5
    s_waitcnt lgkmcnt(0)
    s_barrier
    """)
    AF = 32
    BF = 64
    for c in range(7):
        A(f"ds_read_b64 {vr(AF + c * 4, 2)}, v5 offset:{c * 64}")
        A(f"ds_read_b64 {vr(AF + c * 4 + 2, 2)}, v5 offset:{c * 64 + 32}")
    A("s_waitcnt lgkmcnt(0)")
    for c in range(7):
        acc = vr(24, 4)
        cc = "0" if c == 0 else acc
        A(f"v_mfma_f32_16x16x32_bf16 {acc}, {vr(AF + c * 4, 4)}, {vr(BF + c * 4, 4)}, {cc}")
    A(f"""
    s_lshl_b32 s38, s33, 9
    s_add_u32 s38, s38, {REDD}
    v_add_u32 v8, s38, v3
    s_nop 7
    s_mov_b64 exec, 0xffffffff
    ds_write_b128 v8, v[24:27]
    s_mov_b64 exec, -1
    s_waitcnt lgkmcnt(0)
    s_barrier
    s_cmp_lg_u32 s33, 0
    s_cbranch_scc1 L_k3_fin
    s_mov_b64 exec, 0xffffffff
    """)
    A(f"v_add_u32 v8, {REDD}, v3")
    for w in range(8):
        A(f"ds_read_b128 {vr(32 + w * 4, 4)}, v8 offset:{w * 512}")
    A("s_waitcnt vmcnt(0) lgkmcnt(0)")
    for r in range(4):
        d = 32 + r
        for w in (1, 3, 5, 7):
            A(f"v_add_f32 v{d + (w - 1) * 4}, v{d + (w - 1) * 4}, v{d + w * 4}")
        A(f"v_add_f32 v{d}, v{d}, v{d + 8}")
        A(f"v_add_f32 v{d + 16}, v{d + 16}, v{d + 24}")
        A(f"v_add_f32 v{d}, v{d}, v{d + 16}")
    for r in range(4):
        d = 32 + r
        bf16_round(A, d)
        k = 12 + r
        t = 64
        A(f"v_lshrrev_b32 v{t}, 16, v{k}")
        A(f"v_and_b32 v{t + 1}, 0x7fff, v{t}")
        A(f"v_xor_b32 v{t + 2}, 0xffff, v{t}")
        A(f"v_cmp_lt_u32 vcc, 0x7fff, v{t}")
        A("s_nop 1")
        A(f"v_cndmask_b32 v{t}, v{t + 2}, v{t + 1}, vcc")
        A(f"v_lshlrev_b32 v{t}, 16, v{t}")
        A(f"v_mul_f32 v{t}, 0xbfb8aa3b, v{t}")
        A(f"v_exp_f32 v{t}, v{t}")
        A("s_nop 0")
        A(f"v_add_f32 v{t}, 1.0, v{t}")
        A(f"v_rcp_f32 v{t}, v{t}")
        A("s_nop 0")
        bf16_round(A, t)
        A(f"v_mul_f32 v{d}, v{d}, v{t}")
        bf16_round(A, d)
        p, q, st, x = G + r, G + 4 + r, G + 8 + r, G + 12 + r
        for z in (p, q, x):
            A(f"v_lshlrev_b32 v{z}, 16, v{z}")
        A(f"v_sub_f32 v{p}, v{p}, v{q}")
        bf16_round(A, p)
        A(f"v_add_f32 v{p}, v{p}, v{x}")
        bf16_round(A, p)
        A(f"v_lshlrev_b32 v{q}, 16, v{st}")
        A(f"v_and_b32 v{st}, 0xffff0000, v{st}")
        A(f"v_rcp_f32 v{st}, v{st}")
        A(f"v_sub_f32 v{q}, v{p}, v{q}")
        bf16_round(A, q)
        A(f"v_mul_f32 v{q}, v{q}, v{st}")
        bf16_round(A, q)
        A(f"v_add_f32 v{q}, v{q}, v{d}")
        bf16_round(A, q)
        A(f"v_add_f32 v{p}, v{p}, v{q}")
        A(f"v_cvt_pk_bf16_f32 v{p}, v{p}, v{p}")
        A(f"buffer_store_short v{p}, v{16 + r}, s[24:27], 0 offen sc1")
    A.label("L_k3_fin")
    A("s_waitcnt vmcnt(0)") if STAMPS else None
    stamp(A, 6)
    stamp_dump(A, 9, 2, 12)
    A.label("L_k3_end")
    A("s_endpgm")
    return name, kd(name, 112), (256, 512, K3LDS or (CAND + 256))


HEADER = """; Generated by dev/gen.py -- 3-launch list:
"""


def main():
    global STAMPS, PF_SCHED, SLEEP0, SLEEP1, ROT, K2PRE, K1_EARLY
    for a in sys.argv[2:]:
        if a == "stamps":
            STAMPS = True
        elif "=" in a:
            k, v = a.split("=")
            if k == "pf":
                PF_SCHED = [int(c) for c in v]
            else:
                globals()[k] = int(v)
    A = Asm()
    gens = [gen_k1, gen_k2, gen_k3]
    kds = []
    launches = []
    for g in gens:
        name, kdtext, (grid, block, lds) = g(A)
        kds.append(kdtext)
        launches.append(f"; @launch kernel={name} grid=({grid},1,1) block=({block},1,1) lds={lds}")
    out = HEADER + "\n".join(launches) + "\n"
    out += '.amdgcn_target "amdgcn-amd-amdhsa--gfx950"\n.text\n'
    out += A.text()
    out += '.section .rodata,"a"\n' + "".join(kds)
    path = sys.argv[1] if len(sys.argv) > 1 else f"cdna_kernels/{NAME}.s"
    open(path, "w").write(out)


if __name__ == "__main__":
    main()
```

```python
import sys

NAME = "sequential_preLN__spectral_fnet__moe_arch_mod__prompt"

WS_BF = 0
WS_P = 4 << 20
WS_Q = 6 << 20
WS_HN = 8 << 20
WS_KEYS = 10 << 20
WS_ACT = (10 << 20) + 65536
WS_SEL = (10 << 20) + 131072
WS_REC = (10 << 20) + 262144
WS_FLAG = WS_REC + 16384
WS_FLAGA = WS_REC + 17408
WS_TOTAL = 11 << 20


class Asm:
    def __init__(self):
        self.lines = []

    def __call__(self, s):
        for ln in s.strip("\n").split("\n"):
            ln = ln.strip()
            if ln:
                self.lines.append("    " + ln)

    def label(self, s):
        self.lines.append(s + ":")

    def raw(self, s):
        self.lines.append(s)

    def text(self):
        return "\n".join(self.lines) + "\n"


def vr(a, n):
    return f"v[{a}:{a + n - 1}]"


def sr(a, n):
    return f"s[{a}:{a + n - 1}]"


def srd(A, d, base, nbytes):
    A(f"s_mov_b32 s{d}, s{base}")
    A(f"s_and_b32 s{d + 1}, s{base + 1}, 0xffff")
    A(f"s_mov_b32 s{d + 2}, {nbytes:#x}")
    A(f"s_mov_b32 s{d + 3}, 0x00020000")


def srd_off(A, d, base, off, nbytes):
    A(f"s_add_u32 s{d}, s{base}, {off:#x}")
    A(f"s_addc_u32 s{d + 1}, s{base + 1}, 0")
    A(f"s_and_b32 s{d + 1}, s{d + 1}, 0xffff")
    A(f"s_mov_b32 s{d + 2}, {nbytes:#x}")
    A(f"s_mov_b32 s{d + 3}, 0x00020000")


DPP = "row_mask:0xf bank_mask:0xf"


def row_reduce(A, op, v):
    A("s_nop 1")
    A(f"{op}_dpp v{v}, v{v}, v{v} quad_perm:[1,0,3,2] {DPP}")
    A("s_nop 1")
    A(f"{op}_dpp v{v}, v{v}, v{v} quad_perm:[2,3,0,1] {DPP}")
    A("s_nop 1")
    A(f"{op}_dpp v{v}, v{v}, v{v} row_half_mirror {DPP}")
    A("s_nop 1")
    A(f"{op}_dpp v{v}, v{v}, v{v} row_mirror {DPP}")


def cross_rows_sum(A, v, tmp):
    A(f"v_mov_b32 v{tmp}, v{v}")
    A("s_nop 1")
    A(f"v_permlane16_swap_b32 v{v}, v{tmp}")
    A("s_nop 1")
    A(f"v_add_f32 v{v}, v{v}, v{tmp}")
    A(f"v_mov_b32 v{tmp}, v{v}")
    A("s_nop 1")
    A(f"v_permlane32_swap_b32 v{v}, v{tmp}")
    A("s_nop 1")
    A(f"v_add_f32 v{v}, v{v}, v{tmp}")


def wave_sum(A, v, tmp):
    row_reduce(A, "v_add_f32", v)
    cross_rows_sum(A, v, tmp)


def bf16_round(A, v):
    A(f"v_cvt_pk_bf16_f32 v{v}, v{v}, v{v}")
    A(f"v_lshlrev_b32 v{v}, 16, v{v}")


STAMPS = False
SLEEP0 = 20
K1_WTOUCH = 0
K2PRE = 4
K2POS = [1, 3, 6, 8, 11, 13]
K1_EARLY = 4
ROT = 4
K3LDS = 0
SLEEP1 = 36
PF_SCHED = [3, 3, 4, 4, 9, 9, 9, 9]
WS_STAMP = 12 << 20


def stamp(A, i):
    if STAMPS:
        A(f"s_memtime s[90:91]")
        A("s_waitcnt lgkmcnt(0)")
        A(f"s_mov_b32 s{76 + i}, s90")


def stamp_dump(A, n, kidx, ws_lo):
    if STAMPS:
        A("s_mov_b64 exec, -1")
        A("v_mov_b32 v1, 0")
        for i in range(n):
            A(f"s_sub_u32 s91, s{76 + i}, s76")
            A(f"v_writelane_b32 v1, s91, {i}")
        A(f"s_add_u32 s92, s{ws_lo}, {WS_STAMP + kidx * (1 << 20):#x}")
        A(f"s_addc_u32 s93, s{ws_lo + 1}, 0")
        A("s_and_b32 s93, s93, 0xffff")
        A("s_mov_b32 s94, 0x100000")
        A("s_mov_b32 s95, 0x00020000")
        A("v_lshlrev_b32 v2, 2, v0")
        A("s_lshl_b32 s91, s2, 12")
        A("v_add_u32 v2, s91, v2")
        A("buffer_store_dword v1, v2, s[92:95], 0 offen")


def kernel_header(A, name):
    A.raw(f".globl {name}")
    A.raw(".p2align 8")
    A.raw(f".type {name},@function")
    A.label(name)


def kd(name, vgpr, sgpr=96):
    acc = (vgpr + 3) // 4 * 4
    return f""".p2align 6
.amdhsa_kernel {name}
  .amdhsa_next_free_vgpr {vgpr}
  .amdhsa_next_free_sgpr {sgpr}
  .amdhsa_accum_offset {acc}
  .amdhsa_group_segment_fixed_size 0
  .amdhsa_kernarg_size 104
  .amdhsa_user_sgpr_count 2
  .amdhsa_user_sgpr_kernarg_segment_ptr 1
  .amdhsa_system_sgpr_workgroup_id_x 1
  .amdhsa_float_denorm_mode_32 3
.end_amdhsa_kernel
"""


def gen_k1(A):
    name = "k1_lngemm_kernel"
    kernel_header(A, name)
    A("""
    s_cmp_ge_u32 s2, 256
    s_cbranch_scc1 L_k1_end
    """)
    stamp(A, 0)
    A("""
    s_load_dwordx2 s[4:5], s[0:1], 0
    s_load_dwordx8 s[44:51], s[0:1], 8
    s_load_dwordx2 s[12:13], s[0:1], 96
    s_and_b32 s27, s2, 7
    s_lshr_b32 s26, s2, 3
    s_lshr_b32 s30, s26, 3
    s_lshl_b32 s28, s27, 2
    s_add_u32 s28, s28, s30
    s_and_b32 s29, s26, 7
    v_and_b32 v1, 63, v0
    v_lshrrev_b32 v2, 6, v0
    s_nop 0
    v_readfirstlane_b32 s30, v2
    s_and_b32 s32, s30, 1
    s_lshr_b32 s31, s30, 1
    """)
    WL = 32768
    A("""
    v_and_b32 v8, 15, v1
    v_lshrrev_b32 v9, 4, v1
    v_lshlrev_b32 v10, 4, v1
    """)
    A("""
    s_lshl_b32 s33, s28, 6
    s_lshl_b32 s34, s30, 3
    s_add_u32 s33, s33, s34
    v_add_u32 v2, s33, v9
    v_lshlrev_b32 v2, 10, v2
    v_lshl_add_u32 v2, v8, 4, v2
    """)
    A("""
    s_lshl_b32 s33, s32, 7
    v_xor_b32 v4, s33, v10
    s_and_b32 s33, s29, 3
    s_lshl_b32 s33, s33, 7
    s_lshl_b32 s34, s30, 4
    s_add_u32 s33, s33, s34
    s_lshl_b32 s33, s33, 10
    s_lshl_b32 s34, s30, 14
    """)
    A(f"s_add_u32 s34, s34, {WL}")
    A("""
    s_lshr_b32 s35, s27, 1
    s_lshl_b32 s35, s35, 21
    s_lshl_b32 s36, s26, 16
    s_add_u32 s35, s35, s36
    s_lshl_b32 s36, s30, 13
    s_add_u32 s35, s35, s36
    v_lshlrev_b32 v5, 7, v1
    v_add_u32 v5, s35, v5
    """)
    A("""
    s_and_b32 s37, s29, 3
    s_lshl_b32 s37, s37, 1
    s_lshr_b32 s38, s30, 2
    s_add_u32 s37, s37, s38
    s_lshr_b32 s36, s29, 2
    s_lshl_b32 s35, s36, 21
    s_lshl_b32 s37, s37, 18
    s_add_u32 s35, s35, s37
    s_lshl_b32 s37, s28, 13
    s_add_u32 s35, s35, s37
    s_and_b32 s37, s31, 1
    s_lshl_b32 s37, s37, 12
    s_add_u32 s35, s35, s37
    s_lshl_b32 s37, s32, 10
    s_add_u32 s35, s35, s37
    v_add_u32 v3, s35, v10
    s_waitcnt lgkmcnt(0)
    """)
    srd(A, 16, 4, 2048 * 512 * 2)
    A("""
    s_cmp_eq_u32 s36, 0
    s_cselect_b32 s20, s48, s50
    s_cselect_b32 s21, s49, s51
    s_and_b32 s21, s21, 0xffff
    s_mov_b32 s22, 0x80000
    s_mov_b32 s23, 0x00020000
    s_and_b32 s37, s27, 1
    s_cmp_eq_u32 s37, 0
    s_cselect_b32 s52, s44, s46
    s_cselect_b32 s53, s45, s47
    s_and_b32 s53, s53, 0xffff
    s_mov_b32 s54, 0x800000
    s_mov_b32 s55, 0x00020000
    """)
    srd_off(A, 56, 12, WS_BF, 4 << 20)
    XB = 64
    for g in range(2):
        A(f"s_mov_b32 s38, {g * 4096}")
        for j in range(4):
            A(f"buffer_load_dwordx4 {vr(XB + (g * 4 + j) * 4, 4)}, v2, s[16:19], s38 offen offset:{j * 256}")
    if K1_WTOUCH:
        A("""
        s_cmp_ge_u32 s30, 4
        s_cbranch_scc1 L_k1_nwt
        s_and_b32 s40, s29, 3
        s_lshl_b32 s40, s40, 7
        s_and_b32 s41, s28, 3
        s_lshl_b32 s41, s41, 5
        s_add_u32 s40, s40, s41
        s_lshl_b32 s41, s30, 3
        s_add_u32 s40, s40, s41
        s_lshl_b32 s40, s40, 10
        v_lshlrev_b32 v7, 7, v1
        buffer_load_dword v6, v7, s[20:23], s40 offen
        """)
        A.label("L_k1_nwt")
    dma_groups = []
    for r4 in range(4):
        for rr in range(4):
            r = r4 * 4 + rr
            f = ((r >> 3) * 4 + (r & 3)) * 16
            g = []
            if rr == 0:
                g += [f"s_add_u32 s43, s34, {r4 * 4096}", "s_mov_b32 m0, s43", f"s_add_u32 s41, s33, {r4 * 4096}"]
            g += [f"v_xor_b32 v7, {f:#x}, v4",
                  f"buffer_load_dwordx4 v7, s[20:23], s41 offen offset:{rr * 1024} lds"]
            dma_groups.append(g)
    NEARLY = K1_EARLY
    for g in dma_groups[:NEARLY]:
        for ins in g:
            A(ins)
    dma_rest = dma_groups[NEARLY:]

    def dma_next():
        if dma_rest:
            for ins in dma_rest.pop(0):
                A(ins)
    pfn = [0]
    sched = PF_SCHED

    def pf(point):
        waves = [w for w in range(8) if sched[w] == point]
        if not waves:
            return
        n = pfn[0]
        pfn[0] += 1
        mask = sum(1 << w for w in waves)
        A(f"s_mov_b32 s42, {mask}")
        A("s_bitcmp0_b32 s42, s30")
        A(f"s_cbranch_scc1 L_k1_pf{n}")
        A("buffer_load_dword v6, v5, s[52:55], 0 offen")
        A.label(f"L_k1_pf{n}")

    pf(0)
    stamp(A, 1)
    A("""
    s_and_b32 s40, s30, 3
    s_lshl_b32 s40, s40, 2
    v_add_u32 v14, s40, v9
    v_xor_b32 v14, v14, v8
    v_lshlrev_b32 v14, 4, v14
    s_lshl_b32 s40, s30, 3
    v_add_u32 v15, s40, v9
    v_lshl_add_u32 v16, v15, 9, v14
    v_add_u32 v17, 2048, v16
    """)
    A(f"""
    v_lshrrev_b32 v14, 2, v8
    v_lshlrev_b32 v14, 3, v14
    v_and_b32 v15, 3, v8
    v_add_u32 v14, v14, v15
    s_lshl_b32 s40, s32, 5
    v_add_u32 v15, s40, v14
    v_lshlrev_b32 v15, 9, v15
    s_lshl_b32 s40, s31, 5
    v_add_u32 v14, s40, v14
    v_lshlrev_b32 v14, 10, v14
    v_add_u32 v14, {WL}, v14
    """)
    for k3 in range(4):
        A(f"v_add_u32 v18, {k3 * 4}, v9")
        A("v_xor_b32 v18, v18, v8")
        A(f"v_lshl_add_u32 v{20 + k3}, v18, 4, v15")
        A(f"v_lshl_add_u32 v{24 + k3}, v18, 4, v14")
    A("v_mov_b32 v19, 0x3f803f80")
    if K1_WTOUCH:
        A(f"s_waitcnt vmcnt({NEARLY + 1})")
        A("s_cmp_lt_u32 s30, 4")
        A("s_cbranch_scc1 L_k1_xok")
    A(f"s_waitcnt vmcnt({NEARLY})")
    if K1_WTOUCH:
        A.label("L_k1_xok")
    stamp(A, 2)
    pf(1)
    T = 96
    NG = 2
    for g in range(NG):
        sm = 28 + g
        A(f"v_mov_b32 v{sm}, 0")
        for r in range(16):
            A(f"v_dot2_f32_bf16 v{sm}, v{XB + g * 16 + r}, v19, v{sm}")
            if r % 8 == 7:
                dma_next()
    A("s_nop 1")
    for g in range(NG):
        row_reduce(A, "v_add_f32", 28 + g)
    for g in range(NG):
        sm = 28 + g
        mb = 32 + g
        A(f"v_mul_f32 v{sm}, 0x3b000000, v{sm}")
        A(f"v_mov_b32 v{mb}, v{sm}")
        bf16_round(A, mb)
        A(f"v_sub_f32 v{sm}, v{sm}, v{mb}")
    for g in range(NG):
        q0 = T + 8 + g * 2
        A(f"v_mov_b32 v{q0}, 0")
        A(f"v_mov_b32 v{q0 + 1}, 0")
        for r in range(16):
            x = XB + g * 16 + r
            t = T + 16 + (r & 3) * 2
            A(f"v_lshlrev_b32 v{t}, 16, v{x}")
            A(f"v_and_b32 v{t + 1}, 0xffff0000, v{x}")
            A(f"v_sub_f32 v{t}, v{t}, v{32 + g}")
            A(f"v_sub_f32 v{t + 1}, v{t + 1}, v{32 + g}")
            A(f"v_fmac_f32 v{q0}, v{t}, v{t}")
            A(f"v_fmac_f32 v{q0 + 1}, v{t + 1}, v{t + 1}")
            A(f"v_cvt_pk_bf16_f32 v{x}, v{t}, v{t + 1}")
            if r % 3 == 2:
                dma_next()
        A(f"v_add_f32 v{36 + g}, v{q0}, v{q0 + 1}")
    while dma_rest:
        dma_next()
    pf(2)
    for g in range(NG):
        row_reduce(A, "v_add_f32", 36 + g)
    for g in range(NG):
        vv = 36 + g
        A(f"v_mul_f32 v{vv}, 0x3b000000, v{vv}")
        A(f"v_fma_f32 v{vv}, -v{28 + g}, v{28 + g}, v{vv}")
        A(f"v_max_f32 v{vv}, 0, v{vv}")
        bf16_round(A, vv)
        A(f"v_add_f32 v{vv}, 0x3727c5ac, v{vv}")
        bf16_round(A, vv)
        A(f"v_sqrt_f32 v{vv}, v{vv}")
        A("s_nop 0")
        bf16_round(A, vv)
        A(f"v_rcp_f32 v{T + g}, v{vv}")
    A("s_nop 0")
    for g in range(NG):
        for r in range(16):
            x = XB + g * 16 + r
            t = T + 16 + (r & 3) * 2
            A(f"v_lshlrev_b32 v{t}, 16, v{x}")
            A(f"v_and_b32 v{t + 1}, 0xffff0000, v{x}")
            A(f"v_mul_f32 v{t}, v{t}, v{T + g}")
            A(f"v_mul_f32 v{t + 1}, v{t + 1}, v{T + g}")
            A(f"v_cvt_pk_bf16_f32 v{x}, v{t}, v{t + 1}")
            if (r & 3) == 3 and (r >> 2) < 2:
                j = r >> 2
                A(f"ds_write_b128 v{16 + g}, {vr(XB + (g * 4 + j) * 4, 4)} offset:{j * 256}")
    pf(3)
    stamp(A, 3)
    ACC = 32
    FB = 96

    def rd_list(kc):
        fb = FB + (kc & 1) * 16
        kcl = kc & 7
        out = []
        for h in range(2):
            out.append(f"ds_read_b128 {vr(fb + h * 4, 4)}, v{20 + (kcl & 3)} offset:{h * 2048 + (kcl >> 2) * 256}")
        for i in range(2):
            out.append(f"ds_read_b128 {vr(fb + 8 + i * 4, 4)}, v{24 + (kc & 3)} offset:{i * 4096 + (kc >> 2) * 256}")
        return out

    A("""
    s_waitcnt vmcnt(1) lgkmcnt(0)
    """)
    A(f"s_mov_b32 s42, {sum(1 << w for w in range(8) if sched[w] <= 3)}")
    A("""
    s_bitcmp1_b32 s42, s30
    s_cbranch_scc1 L_k1_w1
    s_waitcnt vmcnt(0)
    """)
    A.label("L_k1_w1")
    A("s_barrier")
    stamp(A, 4)
    pf(4)
    for half in range(2):
        if half == 1:
            pf(6)
            A("s_barrier")
            for g in range(NG):
                for j in (2, 3):
                    A(f"ds_write_b128 v{16 + g}, {vr(XB + (g * 4 + j) * 4, 4)} offset:{(j - 2) * 256}")
            A("s_waitcnt lgkmcnt(0)")
            A("s_barrier")
        for ins in rd_list(half * 8):
            A(ins)
        for kcl in range(8):
            kc = half * 8 + kcl
            fb = FB + (kc & 1) * 16
            nxt = rd_list(kc + 1) if kcl < 7 else []
            for ins in nxt:
                A(ins)
            if kcl == 4:
                pf(5 + 2 * half)
            A(f"s_waitcnt lgkmcnt({len(nxt)})")
            for h in range(2):
                for ii in range(2):
                    acc = vr(ACC + (h * 2 + ii) * 4, 4)
                    a = vr(fb + h * 4, 4)
                    b = vr(fb + 8 + ii * 4, 4)
                    cc = "0" if kc == 0 else acc
                    A(f"v_mfma_f32_16x16x32_bf16 {acc}, {a}, {b}, {cc}")
    A("s_nop 7")
    A("s_nop 1")
    stamp(A, 5)
    for i in range(2):
        o = FB + i * 4
        t0 = ACC + (0 * 2 + i) * 4
        t1 = ACC + (1 * 2 + i) * 4
        A(f"v_cvt_pk_bf16_f32 v{o}, v{t0}, v{t0 + 1}")
        A(f"v_cvt_pk_bf16_f32 v{o + 1}, v{t0 + 2}, v{t0 + 3}")
        A(f"v_cvt_pk_bf16_f32 v{o + 2}, v{t1}, v{t1 + 1}")
        A(f"v_cvt_pk_bf16_f32 v{o + 3}, v{t1 + 2}, v{t1 + 3}")
        A(f"buffer_store_dwordx4 {vr(o, 4)}, v3, s[56:59], 0 offen offset:{i * 2048}")
    A("s_waitcnt vmcnt(0)") if STAMPS else None
    stamp(A, 6)
    stamp_dump(A, 7, 0, 12)
    A.label("L_k1_end")
    A("s_endpgm")
    return name, kd(name, 128), (256, 512, 163840)


def gen_k2(A, NS=6):
    name = "k2_gemm_kernel"
    kernel_header(A, name)
    A("""
    s_cmp_ge_u32 s2, 256
    s_cbranch_scc1 L_k2_end
    """)
    stamp(A, 0)
    A("""
    s_load_dwordx4 s[4:7], s[0:1], 8
    s_load_dwordx2 s[12:13], s[0:1], 96
    s_load_dwordx4 s[44:47], s[0:1], 56
    s_load_dwordx2 s[48:49], s[0:1], 72
    s_and_b32 s28, s2, 7
    s_lshr_b32 s29, s2, 3
    s_and_b32 s30, s28, 1
    s_lshr_b32 s31, s28, 1
    s_lshl_b32 s31, s31, 2
    s_lshr_b32 s32, s29, 3
    s_add_u32 s31, s31, s32
    s_and_b32 s32, s29, 7
    v_and_b32 v1, 63, v0
    v_lshrrev_b32 v2, 6, v0
    s_nop 0
    v_readfirstlane_b32 s33, v2
    """)
    SS = 24576
    A("""
    v_and_b32 v12, 15, v1
    v_lshrrev_b32 v13, 4, v1
    v_and_b32 v14, 7, v1
    v_lshrrev_b32 v15, 3, v1
    s_lshl_b32 s34, s31, 7
    s_lshl_b32 s35, s33, 5
    s_add_u32 s34, s34, s35
    v_add_u32 v2, s34, v15
    v_lshlrev_b32 v2, 12, v2
    v_xor_b32 v3, v14, v15
    v_lshl_add_u32 v8, v3, 4, v2
    """)
    for j in range(1, 4):
        A(f"v_add_u32 v{8 + j}, {j * 32768 - j * 1024:#x}, v8")
    A("""
    v_lshlrev_b32 v5, 4, v1
    s_lshl_b32 s35, s33, 11
    v_add_u32 v4, s35, v5
    """)
    A("""
    v_add_u32 v2, s34, v12
    v_lshlrev_b32 v6, 10, v2
    v_lshl_add_u32 v6, v13, 4, v6
    s_lshl_b32 s36, s30, 21
    s_lshl_b32 s37, s32, 7
    s_add_u32 s36, s36, s37
    v_add_u32 v6, s36, v6
    v_add_u32 v7, 0x4000, v6
    """)
    NH = (NS + 1) // 2
    A("""
    s_lshl_b32 s36, s33, 12
    v_lshlrev_b32 v2, 7, v12
    v_add_u32 v2, s36, v2
    v_xor_b32 v3, v13, v14
    v_lshl_add_u32 v16, v3, 4, v2
    v_xor_b32 v17, 64, v16
    v_add_u32 v18, 0x4000, v5
    """)
    for h in range(1, NH):
        for k in range(3):
            A(f"v_add_u32 v{16 + h * 3 + k}, {h * 2 * SS:#x}, v{16 + k}")
    A("""
    s_waitcnt lgkmcnt(0)
    s_cmp_eq_u32 s30, 0
    s_cselect_b32 s8, s4, s6
    s_cselect_b32 s9, s5, s7
    s_and_b32 s9, s9, 0xffff
    s_mov_b32 s10, 0x800000
    s_mov_b32 s11, 0x00020000
    """)
    A("""
    s_lshl_b32 s37, s30, 21
    s_lshl_b32 s38, s32, 18
    s_add_u32 s37, s37, s38
    s_add_u32 s16, s12, s37
    s_addc_u32 s17, s13, 0
    s_and_b32 s17, s17, 0xffff
    s_mov_b32 s18, 0x40000
    s_mov_b32 s19, 0x00020000
    s_add_u32 s37, s35, 16384
    """)
    srd_off(A, 20, 12, WS_P, 7 << 20)
    A(f"""
    s_cmp_ge_u32 s2, 53
    s_cbranch_scc1 L_k2_nz
    s_cmp_lg_u32 s33, 0
    s_cbranch_scc1 L_k2_nz
    s_lshl_b32 s38, s2, 10
    s_add_u32 s39, s38, {WS_ACT - WS_P - 25 * 1024}
    s_add_u32 s38, s38, {WS_REC - WS_P}
    s_cmp_lt_u32 s2, 25
    s_cselect_b32 s38, s38, s39
    s_cselect_b32 s39, 0, -1
    v_mov_b32 v32, s39
    v_mov_b32 v33, s39
    v_mov_b32 v34, s39
    v_mov_b32 v35, s39
    buffer_store_dwordx4 v[32:35], v5, s[20:23], s38 offen
    s_waitcnt vmcnt(0)
    """)
    A.label("L_k2_nz")
    A("""
    s_lshl_b32 s50, s29, 2
    s_add_u32 s50, s50, s33
    s_cmp_lt_u32 s50, 40
    s_cselect_b32 s52, s44, s46
    s_cselect_b32 s53, s45, s47
    s_cselect_b32 s51, 0, 40
    s_cmp_lt_u32 s50, 80
    s_cselect_b32 s52, s52, s48
    s_cselect_b32 s53, s53, s49
    s_cselect_b32 s51, s51, 80
    s_and_b32 s53, s53, 0xffff
    s_mov_b32 s54, 0x1c0000
    s_mov_b32 s55, 0x00020000
    s_sub_u32 s51, s50, s51
    s_lshl_b32 s51, s51, 6
    v_add_u32 v30, s51, v1
    s_mov_b32 s51, 52429
    v_mul_lo_u32 v31, v30, s51
    v_lshrrev_b32 v31, 18, v31
    v_mul_u32_u24 v29, 5, v31
    v_sub_u32 v29, v30, v29
    s_movk_i32 s51, 3584
    v_mul_lo_u32 v31, v31, s51
    v_lshl_add_u32 v31, v29, 7, v31
    s_mul_i32 s51, s28, 448
    s_and_b32 s51, s51, 0xffffff80
    v_add_u32 v31, s51, v31
    v_lshlrev_b32 v30, 10, v30
    s_lshl_b32 s51, s28, 7
    v_add_u32 v30, s51, v30
    s_cmp_lt_u32 s50, 80
    s_cselect_b64 vcc, -1, 0
    s_nop 1
    v_cndmask_b32 v30, v30, v31, vcc
    """)
    ACC = 32
    FB = 64
    KS = 32

    def issue_groups(step):
        st = step % NS
        g = []
        g.append([f"s_add_u32 s40, s36, {st * SS}", "s_mov_b32 m0, s40", f"s_add_u32 s41, s42, {step}",
                  "s_and_b32 s41, s41, 31", "s_lshl_b32 s39, s41, 7",
                  "buffer_load_dwordx4 v8, s[8:11], s39 offen lds"])
        for j in range(1, 4):
            g.append([f"buffer_load_dwordx4 v{8 + j}, s[8:11], s39 offen offset:{j * 1024} lds"])
        g.append([f"s_add_u32 s40, s37, {st * SS}", "s_mov_b32 m0, s40", "s_lshl_b32 s38, s41, 13",
                  "buffer_load_dwordx4 v4, s[16:19], s38 offen lds"])
        g.append(["buffer_load_dwordx4 v4, s[16:19], s38 offen offset:1024 lds"])
        return g

    def issue(step):
        for g in issue_groups(step):
            for ins in g:
                A(ins)

    def rd_list(step):
        st = step % NS
        h = st >> 1
        so = (st & 1) * SS
        fb = FB + (step & 1) * 48
        out = []
        for ks in range(2):
            for mt in range(4):
                out.append(f"ds_read_b128 {vr(fb + (ks * 4 + mt) * 4, 4)}, v{18 + h * 3} offset:{so + mt * 2048 + ks * 1024}")
            for nt in range(2):
                out.append(f"ds_read_b128 {vr(fb + 32 + (ks * 2 + nt) * 4, 4)}, v{16 + h * 3 + ks} offset:{so + nt * 2048}")
        return out

    def rd(step):
        for ins in rd_list(step):
            A(ins)

    A(f"s_mul_i32 s42, s32, {ROT}")
    stamp(A, 1)
    PRE = K2PRE
    for s_ in range(PRE):
        issue(s_)
    issued = PRE
    stamp(A, 2)
    A(f"s_waitcnt vmcnt({6 * (PRE - 1)})")
    A("s_barrier")
    stamp(A, 3)
    rd(0)
    A("s_waitcnt lgkmcnt(0)")
    for i in range(KS):
        fb = FB + (i & 1) * 48
        if i + 1 < KS:
            A(f"s_waitcnt vmcnt({6 * (issued - 1 - (i + 1)) + (1 if i > KS - NS else 0)})")
            A("s_barrier")
            if i in (1, 2, 4, 8, 16, 24, 30):
                stamp(A, 4 + (1, 2, 4, 8, 16, 24, 30).index(i))
        if i == KS - NS:
            A("buffer_load_dword v29, v30, s[52:55], 0 offen")
        reads = rd_list(i + 1) if i + 1 < KS else []
        groups = []
        nst = 0
        while issued < KS and issued <= i + NS and nst < 2 and i + 1 < KS:
            groups += issue_groups(issued)
            issued += 1
            nst += 1
        if len(groups) <= 6:
            pos = {p: [k] for k, p in enumerate(K2POS)}
        else:
            pos = {k: [k] for k in range(12)}
        n = 0
        for ks in range(2):
            for mt in range(4):
                for nt in range(2):
                    acc = vr(ACC + (mt * 2 + nt) * 4, 4)
                    a = vr(fb + (ks * 4 + mt) * 4, 4)
                    b = vr(fb + 32 + (ks * 2 + nt) * 4, 4)
                    cc = "0" if (i == 0 and ks == 0) else acc
                    A(f"v_mfma_f32_16x16x32_bf16 {acc}, {a}, {b}, {cc}")
                    if n < len(reads):
                        A(reads[n])
                    for gi in pos.get(n, []):
                        if gi < len(groups):
                            for ins in groups[gi]:
                                A(ins)
                    n += 1
        if i + 1 < KS:
            A("s_waitcnt lgkmcnt(0)")
    A("s_nop 7")
    A("s_nop 1")
    for nt in range(2):
        for grp in range(2):
            o = FB + (nt * 2 + grp) * 4
            t0 = ACC + ((2 * grp) * 2 + nt) * 4
            t1 = ACC + ((2 * grp + 1) * 2 + nt) * 4
            A(f"v_cvt_pk_bf16_f32 v{o}, v{t0}, v{t0 + 1}")
            A(f"v_cvt_pk_bf16_f32 v{o + 1}, v{t0 + 2}, v{t0 + 3}")
            A(f"v_cvt_pk_bf16_f32 v{o + 2}, v{t1}, v{t1 + 1}")
            A(f"v_cvt_pk_bf16_f32 v{o + 3}, v{t1 + 2}, v{t1 + 3}")
            A(f"buffer_store_dwordx4 {vr(o, 4)}, v{6 + nt}, s[20:23], 0 offen offset:{grp * 64}")
    A("s_waitcnt vmcnt(0)") if STAMPS else None
    stamp(A, 11)
    stamp_dump(A, 12, 1, 12)
    A.label("L_k2_end")
    A("s_endpgm")
    return name, kd(name, FB + 96), (256, 256, NS * SS)


def unpack8(A, dst, src):
    for j in range(4):
        A(f"v_lshlrev_b32 v{dst + 2 * j}, 16, v{src + j}")
        A(f"v_and_b32 v{dst + 2 * j + 1}, 0xffff0000, v{src + j}")


def pack8(A, dst, src):
    for j in range(4):
        A(f"v_cvt_pk_bf16_f32 v{dst + j}, v{src + 2 * j}, v{src + 2 * j + 1}")


def topk_rounds(A, keys, tmp, out_s, nrows, sW):
    w1 = sW[0]
    A(f"s_mov_b32 s{w1}, -1")
    for rnd, so in enumerate(out_s):
        for k, t in zip(keys, tmp):
            A(f"v_sub_u32 v{t}, s{w1}, v{k}")
        ts = list(tmp)
        m = ts[0]
        rest = ts[1:]
        while rest:
            if len(rest) >= 2:
                A(f"v_min3_u32 v{m}, v{m}, v{rest[0]}, v{rest[1]}")
                rest = rest[2:]
            else:
                A(f"v_min_u32 v{m}, v{m}, v{rest[0]}")
                rest = rest[1:]
        row_reduce(A, "v_min_u32", m)
        A("s_nop 0")
        for r in range(nrows):
            A(f"v_readlane_b32 s{sW[1 + r]}, v{m}, {16 * r}")
        A("s_nop 0")
        for r in range(1, nrows):
            A(f"s_min_u32 s{sW[1]}, s{sW[1]}, s{sW[1 + r]}")
        A(f"s_sub_u32 s{so}, s{w1}, s{sW[1]}")
        A(f"s_sub_u32 s{w1}, s{so}, 1")
        A("s_nop 0")


def h_from_pqx(A, P, Q, X, H, T):
    unpack8(A, H, P)
    unpack8(A, T, Q)
    for j in range(8):
        A(f"v_sub_f32 v{H + j}, v{H + j}, v{T + j}")
    pack8(A, P, H)
    unpack8(A, H, P)


def h_add_x(A, P, X, H, T):
    unpack8(A, T, X)
    for j in range(8):
        A(f"v_add_f32 v{H + j}, v{H + j}, v{T + j}")
    pack8(A, P, H)
    unpack8(A, H, P)


def gen_k3(A):
    name = "k3_tail_kernel"
    kernel_header(A, name)
    A("""
    s_cmp_ge_u32 s2, 256
    s_cbranch_scc1 L_k3_end
    """)
    stamp(A, 0)
    A("""
    s_load_dwordx2 s[4:5], s[0:1], 0
    s_load_dwordx8 s[40:47], s[0:1], 48
    s_load_dwordx2 s[8:9], s[0:1], 80
    s_load_dwordx2 s[12:13], s[0:1], 96
    v_and_b32 v1, 63, v0
    v_lshrrev_b32 v2, 6, v0
    s_nop 0
    v_readfirstlane_b32 s33, v2
    v_lshlrev_b32 v3, 4, v1
    s_mov_b32 s32, 0x200000
    s_waitcnt lgkmcnt(0)
    """)
    srd(A, 16, 4, 2 << 20)
    srd(A, 20, 40, 1024)
    srd(A, 24, 8, 2 << 20)
    srd_off(A, 28, 12, WS_P, 7 << 20)
    A("""
    s_lshl_b32 s3, s2, 3
    s_add_u32 s3, s3, s33
    s_lshl_b32 s34, s3, 10
    v_add_u32 v4, s34, v3
    buffer_load_dwordx4 v[8:11], v4, s[28:31], 0 offen
    buffer_load_dwordx4 v[12:15], v4, s[28:31], s32 offen
    buffer_load_dwordx4 v[16:19], v4, s[16:19], 0 offen
    buffer_load_dwordx4 v[20:23], v3, s[20:23], 0 offen
    s_waitcnt vmcnt(2)
    """)
    stamp(A, 1)
    P, Q, X, H, T, U = 8, 12, 16, 24, 32, 40
    a5, a6, a7 = 5, 6, 7
    K0 = 48
    h_from_pqx(A, P, Q, X, H, T)
    A("s_waitcnt vmcnt(1)")
    h_add_x(A, P, X, H, T)
    A(f"""
    v_add_f32 v{a5}, v{H}, v{H + 1}
    v_add_f32 v{a6}, v{H + 2}, v{H + 3}
    v_add_f32 v{a5}, v{a5}, v{H + 4}
    v_add_f32 v{a6}, v{a6}, v{H + 5}
    v_add_f32 v{a5}, v{a5}, v{H + 6}
    v_add_f32 v{a6}, v{a6}, v{H + 7}
    v_add_f32 v{a5}, v{a5}, v{a6}
    """)
    wave_sum(A, a5, a6)
    A(f"v_mul_f32 v{a5}, 0x3b000000, v{a5}")
    for j in range(8):
        A(f"v_sub_f32 v{T + j}, v{H + j}, v{a5}")
    A(f"v_mul_f32 v{a6}, v{T}, v{T}")
    for j in range(1, 8):
        A(f"v_fmac_f32 v{a6}, v{T + j}, v{T + j}")
    wave_sum(A, a6, a7)
    A(f"v_mul_f32 v{a6}, 0x3b000000, v{a6}")
    bf16_round(A, a6)
    A(f"v_add_f32 v{a6}, 0x3727c5ac, v{a6}")
    bf16_round(A, a6)
    A(f"v_sqrt_f32 v{a6}, v{a6}")
    A("s_nop 0")
    bf16_round(A, a6)
    bf16_round(A, a5)
    A(f"v_lshrrev_b32 v{K0 + 1}, 16, v{a5}")
    A(f"v_or_b32 v{K0 + 1}, v{K0 + 1}, v{a6}")
    A(f"v_rcp_f32 v{a6}, v{a6}")
    for j in range(8):
        A(f"v_sub_f32 v{T + j}, v{H + j}, v{a5}")
    pack8(A, Q, T)
    unpack8(A, T, Q)
    for j in range(8):
        A(f"v_mul_f32 v{T + j}, v{T + j}, v{a6}")
    pack8(A, Q, T)
    unpack8(A, T, Q)
    A("s_waitcnt vmcnt(0)")
    unpack8(A, U, 20)
    A(f"v_mul_f32 v{a7}, v{T}, v{U}")
    for j in range(1, 8):
        A(f"v_fmac_f32 v{a7}, v{T + j}, v{U + j}")
    wave_sum(A, a7, a6)
    A(f"""
    v_cvt_pk_bf16_f32 v{a7}, v{a7}, v{a7}
    v_and_b32 v{a7}, 0xffff, v{a7}
    v_xor_b32 v{a5}, 0xffff, v{a7}
    v_or_b32 v{a6}, 0x8000, v{a7}
    v_cmp_lt_u32 vcc, 0x7fff, v{a7}
    s_nop 1
    v_cndmask_b32 v{a7}, v{a6}, v{a5}, vcc
    v_lshlrev_b32 v{a7}, 16, v{a7}
    s_sub_u32 s34, 0xfff, s3
    v_or_b32 v{K0}, s34, v{a7}
    s_lshl_b32 s34, s3, 3
    s_add_u32 s34, s34, {WS_REC - WS_P}
    v_mov_b32 v5, s34
    s_mov_b64 exec, 1
    buffer_store_dwordx2 v[48:49], v5, s[28:31], 0 offen sc1
    s_mov_b64 exec, -1
    """)
    for j in range(8):
        A(f"v_add_f32 v{U + j}, v{H + j}, v{T + j}")
    pack8(A, X, U)
    A(f"buffer_store_dwordx4 {vr(X, 4)}, v4, s[24:27], 0 offen sc1")
    stamp(A, 2)
    A(f"""
    s_lshl_b32 s34, s3, 2
    s_add_u32 s34, s34, {WS_FLAGA - WS_P}
    v_mov_b32 v5, s34
    v_mov_b32 v6, 1
    s_waitcnt vmcnt(0)
    s_mov_b64 exec, 1
    buffer_store_dword v6, v5, s[28:31], 0 offen sc1
    s_mov_b64 exec, -1
    s_cmp_ge_u32 s2, 144
    s_cbranch_scc1 L_k3_fin
    s_cmp_ge_u32 s2, 112
    s_cbranch_scc1 L_k3_dn_dma
    s_mov_b32 s69, s2
    """)
    A("""
    s_and_b32 s34, s69, 7
    s_mul_i32 s34, s34, 14
    s_lshr_b32 s35, s69, 3
    s_add_u32 s36, s34, s35
    s_lshl_b32 s36, s36, 5
    v_lshrrev_b32 v5, 1, v1
    s_lshl_b32 s34, s33, 6
    v_add_u32 v5, s34, v5
    s_movk_i32 s35, 3584
    v_mul_lo_u32 v5, v5, s35
    v_and_b32 v6, 1, v1
    v_lshl_add_u32 v5, v6, 4, v5
    v_add_u32 v5, s36, v5
    s_lshl_b32 s37, s33, 11
    """)
    srd(A, 60, 42, 512 * 1792 * 2)
    srd(A, 64, 44, 512 * 1792 * 2)
    for mat in range(2):
        for i in range(2):
            A(f"s_add_u32 s38, s37, {mat * 16384 + i * 1024}")
            A("s_mov_b32 m0, s38")
            A(f"s_mov_b32 s39, {i * 32 * 3584}")
            A(f"buffer_load_dwordx4 v5, {sr(60 + mat * 4, 4)}, s39 offen lds")
    A("s_branch L_k3_poll")
    A.label("L_k3_dn_dma")
    A("""
    s_sub_u32 s34, s2, 112
    s_and_b32 s35, s34, 7
    s_lshl_b32 s35, s35, 2
    s_lshr_b32 s34, s34, 3
    s_add_u32 s36, s35, s34
    s_lshl_b32 s36, s36, 5
    s_mul_i32 s34, s33, 224
    v_lshrrev_b32 v5, 1, v1
    v_add_u32 v5, s34, v5
    v_lshlrev_b32 v5, 10, v5
    v_and_b32 v6, 1, v1
    v_lshl_add_u32 v5, v6, 4, v5
    v_add_u32 v5, s36, v5
    s_mul_i32 s37, s33, 7*1024
    """)
    srd(A, 60, 46, 1792 * 512 * 2)
    for i in range(7):
        A(f"s_add_u32 s38, s37, {i * 1024}")
        A("s_mov_b32 m0, s38")
        A(f"s_mov_b32 s39, {i * 32 * 1024}")
        A("buffer_load_dwordx4 v5, s[60:63], s39 offen lds")
    A.label("L_k3_poll")
    A(f"""
    v_lshlrev_b32 v6, 5, v0
    v_add_u32 v6, {WS_REC - WS_P}, v6
    """)
    stamp(A, 7)
    A(f"s_sleep {SLEEP0}")
    A.label("L_k3_poll_loop")
    A("""
    buffer_load_dwordx4 v[8:11], v6, s[28:31], 0 offen sc1
    buffer_load_dwordx4 v[12:15], v6, s[28:31], 0 offen offset:16 sc1
    s_waitcnt vmcnt(0)
    v_min_u32 v7, v8, v10
    v_min3_u32 v7, v7, v12, v14
    v_cmp_eq_u32 vcc, 0, v7
    s_cbranch_vccz L_k3_poll_done
    s_sleep 8
    s_branch L_k3_poll_loop
    """)
    A.label("L_k3_poll_done")
    stamp(A, 3)
    CAND = 57344 + 4096
    topk_rounds(A, [8, 10, 12, 14], [16, 17, 18, 19], list(range(48, 56)), 4, [56, 57, 58, 59, 68])
    A("v_mov_b32 v7, 0")
    for c in range(8):
        A(f"v_writelane_b32 v7, s{48 + c}, {c}")
    A(f"""
    s_lshl_b32 s38, s33, 5
    s_add_u32 s38, s38, {CAND}
    v_lshlrev_b32 v16, 2, v1
    v_add_u32 v17, s38, v16
    s_mov_b64 exec, 0xff
    ds_write_b32 v17, v7
    s_mov_b64 exec, -1
    s_waitcnt lgkmcnt(0)
    s_barrier
    v_add_u32 v16, {CAND}, v16
    ds_read_b32 v8, v16
    s_waitcnt lgkmcnt(0)
    """)
    topk_rounds(A, [8], [16], list(range(48, 56)), 4, [56, 57, 58, 59, 68])
    stamp(A, 4)
    A("""
    s_cmp_ge_u32 s2, 112
    s_cbranch_scc1 L_k3_dn
    """)
    XS = 32768
    A("v_mov_b32 v7, 0")
    for c in range(8):
        A(f"v_writelane_b32 v7, s{48 + c}, {c}")
    A(f"""
    s_nop 0
    v_readlane_b32 s38, v7, s33
    s_and_b32 s38, s38, 0x7ff
    s_sub_u32 s38, 0x7ff, s38
    s_lshl_b32 s39, s38, 3
    s_add_u32 s39, s39, {WS_REC - WS_P}
    s_lshl_b32 s38, s38, 10
    v_add_u32 v4, s38, v3
    v_mov_b32 v5, s39
    buffer_load_dwordx4 v[8:11], v4, s[28:31], 0 offen
    buffer_load_dwordx4 v[12:15], v4, s[28:31], s32 offen
    buffer_load_dwordx4 v[16:19], v4, s[16:19], 0 offen
    buffer_load_dwordx2 v[20:21], v5, s[28:31], 0 offen sc1
    s_mul_i32 s38, s33, 1040
    s_add_u32 s38, s38, {XS}
    v_add_u32 v22, s38, v3
    s_waitcnt vmcnt(2)
    """)
    h_from_pqx(A, 8, 12, 16, 24, 32)
    A("s_waitcnt vmcnt(1)")
    h_add_x(A, 8, 16, 24, 32)
    A("""
    s_waitcnt vmcnt(0)
    v_lshlrev_b32 v5, 16, v21
    v_and_b32 v6, 0xffff0000, v21
    v_rcp_f32 v6, v6
    """)
    for j in range(8):
        A(f"v_sub_f32 v{32 + j}, v{24 + j}, v5")
    pack8(A, 12, 32)
    unpack8(A, 32, 12)
    for j in range(8):
        A(f"v_mul_f32 v{32 + j}, v{32 + j}, v6")
    pack8(A, 12, 32)
    A(f"""
    ds_write_b128 v22, v[12:15]
    v_and_b32 v8, 7, v1
    s_movk_i32 s38, 1040
    v_mul_lo_u32 v8, v8, s38
    v_lshrrev_b32 v9, 4, v1
    v_lshl_add_u32 v8, v9, 3, v8
    s_lshl_b32 s38, s33, 7
    s_add_u32 s38, s38, {XS}
    v_add_u32 v8, s38, v8
    v_lshlrev_b32 v10, 3, v1
    v_add_u32 v10, s37, v10
    s_waitcnt lgkmcnt(0)
    s_barrier
    """)
    stamp(A, 5)
    AF = 32
    BF = 48
    for c in range(2):
        A(f"ds_read_b64 {vr(AF + c * 4, 2)}, v8 offset:{c * 64}")
        A(f"ds_read_b64 {vr(AF + c * 4 + 2, 2)}, v8 offset:{c * 64 + 32}")
    for mat in range(2):
        for c in range(2):
            b = BF + (mat * 2 + c) * 4
            A(f"ds_read_b64_tr_b16 {vr(b, 2)}, v10 offset:{mat * 16384 + c * 1024}")
            A(f"ds_read_b64_tr_b16 {vr(b + 2, 2)}, v10 offset:{mat * 16384 + c * 1024 + 512}")
    A("s_waitcnt lgkmcnt(0)")
    for c in range(2):
        for mat in range(2):
            acc = vr(80 + mat * 4, 4)
            cc = "0" if c == 0 else acc
            A(f"v_mfma_f32_16x16x32_bf16 {acc}, {vr(AF + c * 4, 4)}, {vr(BF + (mat * 2 + c) * 4, 4)}, {cc}")
    REDU = 41472
    A(f"""
    s_lshl_b32 s38, s33, 10
    s_add_u32 s38, s38, {REDU}
    v_add_u32 v12, s38, v3
    s_nop 7
    s_mov_b64 exec, 0xffffffff
    ds_write_b128 v12, v[80:83]
    ds_write_b128 v12, v[84:87] offset:512
    s_mov_b64 exec, -1
    s_waitcnt lgkmcnt(0)
    s_barrier
    s_cmp_lg_u32 s33, 0
    s_cbranch_scc1 L_k3_fin
    s_mov_b64 exec, 0xffffffff
    """)
    for w in range(8):
        for mat in range(2):
            A(f"ds_read_b128 {vr(32 + (w * 2 + mat) * 4, 4)}, v3 offset:{REDU + w * 1024 + mat * 512}")
    A("s_waitcnt lgkmcnt(0)")
    for mat in range(2):
        for r in range(4):
            d = 32 + mat * 4 + r
            for w in (1, 3, 5, 7):
                A(f"v_add_f32 v{d + (w - 1) * 8}, v{d + (w - 1) * 8}, v{d + w * 8}")
            A(f"v_add_f32 v{d}, v{d}, v{d + 16}")
            A(f"v_add_f32 v{d + 32}, v{d + 32}, v{d + 48}")
            A(f"v_add_f32 v{d}, v{d}, v{d + 32}")
            bf16_round(A, d)
    for r in range(4):
        g = 32 + r
        u = 36 + r
        t = 40 + r
        A(f"v_mul_f32 v{t}, 0xbfb8aa3b, v{g}")
        A(f"v_exp_f32 v{t}, v{t}")
        A("s_nop 0")
        A(f"v_add_f32 v{t}, 1.0, v{t}")
        A(f"v_rcp_f32 v{t}, v{t}")
        A("s_nop 0")
        A(f"v_mul_f32 v{g}, v{g}, v{t}")
        bf16_round(A, g)
        A(f"v_mul_f32 v{g}, v{g}, v{u}")
        A(f"v_cvt_pk_bf16_f32 v{g}, v{g}, v{g}")
        A(f"v_and_b32 v{g}, 0xffff, v{g}")
        A(f"v_min_u32 v{g}, 0xfffe, v{g}")
    A(f"""
    v_lshrrev_b32 v9, 4, v1
    s_movk_i32 s38, 3584*4
    v_mul_lo_u32 v9, v9, s38
    v_and_b32 v10, 15, v1
    v_lshl_add_u32 v9, v10, 1, v9
    s_add_u32 s38, s36, {WS_ACT - WS_P}
    v_add_u32 v9, s38, v9
    """)
    for r in range(4):
        A(f"s_mov_b32 s39, {r * 3584}")
        A(f"buffer_store_short v{32 + r}, v9, s[28:31], s39 offen sc1")
    A("s_branch L_k3_fin")
    A.label("L_k3_dn")
    ACTL = 0
    REDD = 57344
    G = 96
    A("""
    v_mov_b32 v16, 0
    v_mov_b32 v17, 0
    v_mov_b32 v18, 0
    v_mov_b32 v19, 0
    s_cmp_lg_u32 s33, 0
    s_cbranch_scc1 L_k3_dn_nog
    v_cmp_lt_u32 vcc, 15, v1
    v_and_b32 v10, 15, v1
    v_lshlrev_b32 v10, 1, v10
    v_add_u32 v10, s36, v10
    """)
    for r in range(4):
        A(f"v_mov_b32 v{12 + r}, s{48 + r}")
        A(f"v_mov_b32 v24, s{52 + r}")
        A(f"v_cndmask_b32 v{12 + r}, v{12 + r}, v24, vcc")
        A(f"v_and_b32 v{16 + r}, 0x7ff, v{12 + r}")
        A(f"v_sub_u32 v{16 + r}, 0x7ff, v{16 + r}")
        A(f"v_lshlrev_b32 v{20 + r}, 3, v{16 + r}")
        A(f"v_add_u32 v{20 + r}, {WS_REC - WS_P + 4}, v{20 + r}")
        A(f"v_lshl_add_u32 v{16 + r}, v{16 + r}, 10, v10")
    A("s_mov_b64 exec, 0xffffffff")
    for r in range(4):
        A(f"buffer_load_ushort v{G + r}, v{16 + r}, s[28:31], 0 offen")
        A(f"buffer_load_ushort v{G + 4 + r}, v{16 + r}, s[28:31], s32 offen")
        A(f"buffer_load_dword v{G + 8 + r}, v{20 + r}, s[28:31], 0 offen sc1")
        A(f"buffer_load_ushort v{G + 12 + r}, v{16 + r}, s[16:19], 0 offen")
    A("s_mov_b64 exec, -1")
    A.label("L_k3_dn_nog")
    A("""
    s_cmp_lg_u32 s33, 0
    s_cbranch_scc1 L_k3_fl_wait
    v_mov_b32 v6, 0
    """)
    for c in range(8):
        A(f"v_writelane_b32 v6, s{48 + c}, {c}")
    A(f"""
    v_mov_b32 v7, s48
    v_cmp_gt_u32 vcc, 8, v1
    s_nop 1
    v_cndmask_b32 v6, v7, v6, vcc
    v_and_b32 v6, 0x7ff, v6
    v_sub_u32 v6, 0x7ff, v6
    v_lshlrev_b32 v6, 2, v6
    v_add_u32 v6, {WS_FLAGA - WS_P}, v6
    """)
    A.label("L_k3_fl_loop")
    A("""
    buffer_load_dword v8, v6, s[28:31], 0 offen sc1
    s_waitcnt vmcnt(0)
    v_cmp_eq_u32 vcc, 0, v8
    s_cbranch_vccz L_k3_fl_ok
    s_sleep 8
    s_branch L_k3_fl_loop
    """)
    A.label("L_k3_fl_ok")
    for r in range(4):
        k = 12 + r
        t = 24
        p, q, st, x = G + r, G + 4 + r, G + 8 + r, G + 12 + r
        for z in (p, q, x):
            A(f"v_lshlrev_b32 v{z}, 16, v{z}")
        A(f"v_sub_f32 v{p}, v{p}, v{q}")
        bf16_round(A, p)
        A(f"v_add_f32 v{p}, v{p}, v{x}")
        bf16_round(A, p)
        A(f"v_lshlrev_b32 v{q}, 16, v{st}")
        A(f"v_and_b32 v{st}, 0xffff0000, v{st}")
        A(f"v_rcp_f32 v{st}, v{st}")
        A(f"v_sub_f32 v{q}, v{p}, v{q}")
        bf16_round(A, q)
        A(f"v_mul_f32 v{q}, v{q}, v{st}")
        bf16_round(A, q)
        A(f"v_lshrrev_b32 v{t}, 16, v{k}")
        A(f"v_and_b32 v{t + 1}, 0x7fff, v{t}")
        A(f"v_xor_b32 v{t + 2}, 0xffff, v{t}")
        A(f"v_cmp_lt_u32 vcc, 0x7fff, v{t}")
        A("s_nop 1")
        A(f"v_cndmask_b32 v{t}, v{t + 2}, v{t + 1}, vcc")
        A(f"v_lshlrev_b32 v{t}, 16, v{t}")
        A(f"v_mul_f32 v{t}, 0xbfb8aa3b, v{t}")
        A(f"v_exp_f32 v{t}, v{t}")
        A("s_nop 0")
        A(f"v_add_f32 v{t}, 1.0, v{t}")
        A(f"v_rcp_f32 v{st}, v{t}")
        A("s_nop 0")
        bf16_round(A, st)
    A.label("L_k3_fl_wait")
    A("""
    v_lshlrev_b32 v7, 3, v1
    v_add_u32 v7, s37, v7
    s_waitcnt vmcnt(0)
    """)
    for c in range(7):
        b = 64 + c * 4
        A(f"ds_read_b64_tr_b16 {vr(b, 2)}, v7 offset:{c * 1024}")
        A(f"ds_read_b64_tr_b16 {vr(b + 2, 2)}, v7 offset:{c * 1024 + 512}")
    A("s_waitcnt lgkmcnt(0)")
    A("s_barrier")
    A(f"""
    s_mul_i32 s38, s33, 3584
    s_add_u32 s38, s38, {WS_ACT - WS_P}
    v_add_u32 v5, s38, v3
    s_mul_i32 s38, s33, 3600
    s_add_u32 s38, s38, {ACTL}
    v_add_u32 v6, s38, v3
    v_mov_b32 v44, 0
    v_mov_b32 v45, 0
    v_mov_b32 v46, 0
    v_mov_b32 v47, 0
    s_sleep {SLEEP1}
    """)
    A.label("L_k3_act_loop")
    for i in range(3):
        A(f"buffer_load_dwordx4 {vr(32 + i * 4, 4)}, v5, s[28:31], 0 offen offset:{i * 1024} sc1")
    A("""
    s_mov_b64 exec, 0xffffffff
    buffer_load_dwordx4 v[44:47], v5, s[28:31], 0 offen offset:3072 sc1
    s_mov_b64 exec, -1
    s_waitcnt vmcnt(0)
    v_pk_max_u16 v8, v32, v33
    """)
    for i in range(34, 48):
        A(f"v_pk_max_u16 v8, v8, v{i}")
    A("""
    v_lshrrev_b32 v9, 16, v8
    v_and_b32 v8, 0xffff, v8
    v_max_u32 v8, v8, v9
    v_cmp_eq_u32 vcc, 0xffff, v8
    s_cbranch_vccz L_k3_act_done
    s_sleep 4
    s_branch L_k3_act_loop
    """)
    A.label("L_k3_act_done")
    stamp(A, 5)
    for i in range(3):
        A(f"ds_write_b128 v6, {vr(32 + i * 4, 4)} offset:{i * 1024}")
    A(f"""
    s_mov_b64 exec, 0xffffffff
    ds_write_b128 v6, v[44:47] offset:3072
    s_mov_b64 exec, -1
    v_lshlrev_b32 v7, 3, v1
    v_add_u32 v7, s37, v7
    v_and_b32 v5, 7, v1
    s_movk_i32 s38, 3600
    v_mul_lo_u32 v5, v5, s38
    v_lshrrev_b32 v6, 4, v1
    v_lshl_add_u32 v5, v6, 3, v5
    s_mul_i32 s38, s33, 448
    s_add_u32 s38, s38, {ACTL}
    v_add_u32 v5, s38, v5
    s_waitcnt lgkmcnt(0)
    s_barrier
    """)
    AF = 32
    BF = 64
    for c in range(7):
        A(f"ds_read_b64 {vr(AF + c * 4, 2)}, v5 offset:{c * 64}")
        A(f"ds_read_b64 {vr(AF + c * 4 + 2, 2)}, v5 offset:{c * 64 + 32}")
    A("s_waitcnt lgkmcnt(0)")
    for c in range(7):
        acc = vr(24, 4)
        cc = "0" if c == 0 else acc
        A(f"v_mfma_f32_16x16x32_bf16 {acc}, {vr(AF + c * 4, 4)}, {vr(BF + c * 4, 4)}, {cc}")
    A(f"""
    s_lshl_b32 s38, s33, 9
    s_add_u32 s38, s38, {REDD}
    v_add_u32 v8, s38, v3
    s_nop 7
    s_mov_b64 exec, 0xffffffff
    ds_write_b128 v8, v[24:27]
    s_mov_b64 exec, -1
    s_waitcnt lgkmcnt(0)
    s_barrier
    s_cmp_lg_u32 s33, 0
    s_cbranch_scc1 L_k3_fin
    s_mov_b64 exec, 0xffffffff
    """)
    A(f"v_add_u32 v8, {REDD}, v3")
    for w in range(8):
        A(f"ds_read_b128 {vr(32 + w * 4, 4)}, v8 offset:{w * 512}")
    A("s_waitcnt vmcnt(0) lgkmcnt(0)")
    for r in range(4):
        d = 32 + r
        for w in (1, 3, 5, 7):
            A(f"v_add_f32 v{d + (w - 1) * 4}, v{d + (w - 1) * 4}, v{d + w * 4}")
        A(f"v_add_f32 v{d}, v{d}, v{d + 8}")
        A(f"v_add_f32 v{d + 16}, v{d + 16}, v{d + 24}")
        A(f"v_add_f32 v{d}, v{d}, v{d + 16}")
    for r in range(4):
        d = 32 + r
        p, q, st = G + r, G + 4 + r, G + 8 + r
        bf16_round(A, d)
        A(f"v_mul_f32 v{d}, v{d}, v{st}")
        bf16_round(A, d)
        A(f"v_add_f32 v{q}, v{q}, v{d}")
        bf16_round(A, q)
        A(f"v_add_f32 v{p}, v{p}, v{q}")
        A(f"v_cvt_pk_bf16_f32 v{p}, v{p}, v{p}")
        A(f"buffer_store_short v{p}, v{16 + r}, s[24:27], 0 offen sc1")
    A.label("L_k3_fin")
    A("s_waitcnt vmcnt(0)") if STAMPS else None
    stamp(A, 6)
    stamp_dump(A, 9, 2, 12)
    A.label("L_k3_end")
    A("s_endpgm")
    return name, kd(name, 112), (256, 512, K3LDS or (CAND + 256))


HEADER = """; Generated by dev/gen.py -- 3-launch list:
"""


def main():
    global STAMPS, PF_SCHED, SLEEP0, SLEEP1, ROT, K2PRE, K1_EARLY
    for a in sys.argv[2:]:
        if a == "stamps":
            STAMPS = True
        elif "=" in a:
            k, v = a.split("=")
            if k == "pf":
                PF_SCHED = [int(c) for c in v]
            else:
                globals()[k] = int(v)
    A = Asm()
    gens = [gen_k1, gen_k2, gen_k3]
    kds = []
    launches = []
    for g in gens:
        name, kdtext, (grid, block, lds) = g(A)
        kds.append(kdtext)
        launches.append(f"; @launch kernel={name} grid=({grid},1,1) block=({block},1,1) lds={lds}")
    out = HEADER + "\n".join(launches) + "\n"
    out += '.amdgcn_target "amdgcn-amd-amdhsa--gfx950"\n.text\n'
    out += A.text()
    out += '.section .rodata,"a"\n' + "".join(kds)
    path = sys.argv[1] if len(sys.argv) > 1 else f"cdna_kernels/{NAME}.s"
    open(path, "w").write(out)


if __name__ == "__main__":
    main()
```
